```python
import torch

def _softmax(x, axis=-1):
    return torch.softmax(x, dim=axis)
def _gelu(x):
    return torch.nn.functional.gelu(x, approximate="tanh")
def _silu(x):
    return torch.nn.functional.silu(x)
def _sigmoid(x):
    return torch.sigmoid(x)
def _layernorm(x, axis=-1, eps=1e-5):
    m = x.mean(dim=axis, keepdim=True)
    v = x.var(dim=axis, keepdim=True, unbiased=False)
    return (x - m) / torch.sqrt(v + eps)
def _scatter_add(tgt, idx, src, axis=0):
    return tgt.clone().index_add_(axis, idx, src)
def _segment_sum(src, seg, n):
    out = torch.zeros((n,) + src.shape[1:], dtype=src.dtype)
    return out.index_add_(0, seg, src)
def _pad(x, pw):
    flat = tuple(v for pair in reversed(pw) for v in pair)
    return torch.nn.functional.pad(x, flat)

kernel_name = 'gated_mix__spectral_fnet__swiglu_ffn__prompt'

def setup_inputs():

    _w = (lambda a: (lambda t: t.to(torch.bfloat16) if t.is_floating_point() else t)(torch.as_tensor(a)))
    def _A_setup():
        B, S, D = 1, 2048, 512
        ns = torch.arange(S)[:, None] * torch.arange(S)[None, :]
        nd = torch.arange(D)[:, None] * torch.arange(D)[None, :]
        Ws_re = torch.cos(-2.0 * torch.pi * ns / S).to(float)
        Ws_im = torch.sin(-2.0 * torch.pi * ns / S).to(float)
        Wd_re = torch.cos(-2.0 * torch.pi * nd / D).to(float)
        Wd_im = torch.sin(-2.0 * torch.pi * nd / D).to(float)
        return {
            "x": _w((lambda *s: torch.randn(*s, dtype=torch.bfloat16) * 0.05)(B, S, D)),
            "dft_seq_re": _w(Ws_re),
            "dft_seq_im": _w(Ws_im),
            "dft_hid_re": _w(Wd_re),
            "dft_hid_im": _w(Wd_im),
        }
    _A_in = _A_setup()

    def _B_setup():
        B, S, D, F = 1, 2048, 512, 1792
        return {
            "x": _w((lambda *s: torch.randn(*s, dtype=torch.bfloat16) * 0.05)(B, S, D)),
            "w_gate": _w((lambda *s: torch.randn(*s, dtype=torch.bfloat16) * 0.8)(D, F)),
            "w_up": _w((lambda *s: torch.randn(*s, dtype=torch.bfloat16) * 0.8)(D, F)),
            "w_down": _w((lambda *s: torch.randn(*s, dtype=torch.bfloat16) * 0.8)(F, D)),
        }
    _B_in = _B_setup()

    return {
        "A_x": _A_in["x"],
        "A_dft_seq_re": _A_in["dft_seq_re"],
        "A_dft_seq_im": _A_in["dft_seq_im"],
        "A_dft_hid_re": _A_in["dft_hid_re"],
        "A_dft_hid_im": _A_in["dft_hid_im"],
        "B_x": _B_in["x"],
        "B_w_gate": _B_in["w_gate"],
        "B_w_up": _B_in["w_up"],
        "B_w_down": _B_in["w_down"],
        "gate_w": _w((lambda *s: torch.randn(*s, dtype=torch.bfloat16) * 0.05)(512) * 16.0),
    }

def reference(A_x, A_dft_seq_re, A_dft_seq_im, A_dft_hid_re, A_dft_hid_im, B_x, B_w_gate, B_w_up, B_w_down, gate_w):
    def _A_ref(x, dft_seq_re, dft_seq_im, dft_hid_re, dft_hid_im):
        a = torch.einsum("bsd,ed->bse", x, dft_hid_re)
        b = torch.einsum("bsd,ed->bse", x, dft_hid_im)
        y = torch.einsum("ts,bse->bte", dft_seq_re, a) - torch.einsum("ts,bse->bte", dft_seq_im, b)
        return y

    def _B_ref(x, w_gate, w_up, w_down):
        g = _silu(x @ w_gate)
        u = x @ w_up
        return (g * u) @ w_down

    x = A_x
    g = _sigmoid((x * gate_w).sum(-1, keepdims=True))
    a = _A_ref(x, A_dft_seq_re, A_dft_seq_im, A_dft_hid_re, A_dft_hid_im)
    b = _B_ref(x, B_w_gate, B_w_up, B_w_down)
    return g * a + (1 - g) * b
```

```python
import sys
OPT = dict(a.split('=') for a in sys.argv[2:])
K1MAP = OPT.get('k1map', 'M')
K2MAP = OPT.get('k2map', 'A')
RING = int(OPT.get('ring', 14))
NAME = "gated_mix__spectral_fnet__swiglu_ffn__prompt"
L = []
def e(s): L.append("    " + s)
def lab(s): L.append(s + ":")
H_OFF = 0
WD_OFF = H_OFF + 32*112*2048
CS_OFF = WD_OFF + 8*112*2048
EO_OFF = CS_OFF + 32*33*2048
GT_OFF = EO_OFF + 16*33*2048
WS_SIZE = GT_OFF + 8192
def srd(d, p, n):
    e(f"s_mov_b32 s{d}, s{p}"); e(f"s_mov_b32 s{d+1}, s{p+1}")
    e(f"s_mov_b32 s{d+2}, {n}"); e(f"s_mov_b32 s{d+3}, 0x00020000")
def vr(a, n): return f"v[{a}:{a+n-1}]"
def ar(a, n): return f"a[{a}:{a+n-1}]"

hdr = open('cdna_kernels/' + NAME + '.s.ref').read().split('\n')
for l in hdr:
    if l.startswith('; @launch'): break
    L.append(l)
L.append("; @launch kernel=k1_kernel grid=(256,1,1) block=(512,1,1) lds=147456")
L.append("; @launch kernel=k2_kernel grid=(256,1,1) block=(256,1,1) lds=65536")
L.append('.amdgcn_target "amdgcn-amd-amdhsa--gfx950"')
L.append(".text")

L += [".globl k1_kernel", ".p2align 8", ".type k1_kernel,@function"]
lab("k1_kernel")
e("s_cmp_ge_u32 s2, 256"); e("s_cbranch_scc1 K1_END")
e("s_load_dwordx8 s[40:47], s[0:1], 0")
e("s_load_dwordx2 s[48:49], s[0:1], 32")
e("s_load_dwordx8 s[52:59], s[0:1], 48")
e("s_load_dwordx2 s[60:61], s[0:1], 96")
e("v_lshrrev_b32 v1, 6, v0"); e("v_and_b32 v0, 63, v0")
e("v_readfirstlane_b32 s3, v1")
e("s_and_b32 s4, s2, 7"); e("s_lshr_b32 s5, s2, 3")
if K1MAP == 'M':
    e("s_and_b32 s6, s4, 1"); e("s_lshl_b32 s6, s6, 3"); e("s_and_b32 s7, s5, 7"); e("s_add_u32 s6, s6, s7")
    e("s_lshr_b32 s7, s4, 1"); e("s_lshl_b32 s7, s7, 2"); e("s_lshr_b32 s5, s5, 3"); e("s_add_u32 s7, s7, s5")
elif K1MAP == 'N':
    e("s_and_b32 s6, s4, 3"); e("s_lshl_b32 s6, s6, 2"); e("s_and_b32 s7, s5, 3"); e("s_add_u32 s6, s6, s7")
    e("s_lshr_b32 s7, s4, 2"); e("s_lshl_b32 s7, s7, 3"); e("s_lshr_b32 s5, s5, 2"); e("s_add_u32 s7, s7, s5")
else:
    e("s_lshl_b32 s6, s4, 1"); e("s_and_b32 s7, s5, 1"); e("s_add_u32 s6, s6, s7"); e("s_lshr_b32 s7, s5, 1")
e("s_lshl_b32 s36, s3, 4")
e("v_lshrrev_b32 v4, 3, v0"); e("v_add_u32 v4, s36, v4")
e("s_cmp_ge_u32 s7, 14"); e("s_cbranch_scc1 K1_ROWS_DFT")
for q in range(2):
    if q: e("v_add_u32 v4, 8, v4")
    e("v_and_b32 v5, 31, v4"); e("v_lshlrev_b32 v5, 1, v5"); e("v_lshrrev_b32 v6, 6, v4"); e("v_add_u32 v5, v5, v6")
    e("s_lshl_b32 s36, s6, 6"); e("v_add_u32 v5, s36, v5")
    e("v_sub_u32 v6, 0x800, v5"); e("v_cmp_eq_u32 vcc, 0, v5"); e("v_mov_b32 v7, 0x400"); e("s_nop 1")
    e("v_cndmask_b32 v6, v6, v7, vcc")
    e("v_and_b32 v7, 32, v4"); e("v_cmp_ne_u32 vcc, 0, v7"); e("s_nop 1"); e(f"v_cndmask_b32 v{2+q}, v5, v6, vcc")
e("s_branch K1_ROWS_DONE")
lab("K1_ROWS_DFT")
def fold_row(dst, sreg, grp, t0, t1):
    e(f"v_sub_u32 v{t0}, 0, v{sreg}")
    e(f"v_mov_b32 v{t1}, 0xfffffe00"); e(f"v_cmp_eq_u32 vcc, 0, v{sreg}"); e("s_nop 1")
    e(f"v_cndmask_b32 v{t0}, v{t0}, v{t1}, vcc")
    e(f"v_add_u32 v{t1}, 1, v{grp}"); e(f"v_and_b32 v{t1}, 2, v{t1}"); e(f"v_cmp_ne_u32 vcc, 0, v{t1}"); e("s_nop 1")
    e(f"v_cndmask_b32 v{t0}, v{sreg}, v{t0}, vcc")
    e(f"v_lshrrev_b32 v{t1}, 1, v{grp}"); e(f"v_lshlrev_b32 v{t1}, 10, v{t1}")
    e(f"v_add_u32 v{t0}, v{t0}, v{t1}"); e(f"v_and_b32 v{dst}, 0x7ff, v{t0}")
for q in range(2):
    if q: e("v_add_u32 v4, 8, v4")
    e("v_and_b32 v5, 0x13, v4"); e("v_and_b32 v6, 4, v4"); e("v_lshl_add_u32 v5, v6, 1, v5")
    e("v_and_b32 v6, 8, v4"); e("v_lshrrev_b32 v6, 1, v6"); e("v_add_u32 v5, v5, v6")
    e("s_lshl_b32 s36, s6, 5"); e("v_add_u32 v5, s36, v5")
    e("v_lshrrev_b32 v6, 5, v4")
    fold_row(2+q, 5, 6, 7, 8)
lab("K1_ROWS_DONE")
for q in range(2):
    e("v_lshrrev_b32 v5, 4, v0")
    if q: e("v_add_u32 v5, 4, v5")
    e("v_xor_b32 v5, v5, v0"); e("v_and_b32 v5, 7, v5"); e("v_lshlrev_b32 v5, 4, v5")
    e(f"v_lshl_add_u32 v{2+q}, v{2+q}, 10, v5")
e("s_waitcnt lgkmcnt(0)")
srd(8, 40, 2048*1024); srd(20, 60, WS_SIZE); srd(24, 56, 1792*1024); srd(32, 58, 1024)
e("s_cmp_ge_u32 s7, 14"); e("s_cbranch_scc1 K1_B_DFT")
srd(12, 52, 512*3584); srd(16, 54, 512*3584)
e("s_movk_i32 s37, 3584"); e("s_lshl_b32 s38, s7, 8"); e("s_mov_b32 s39, 0")
e("s_branch K1_B_DONE")
lab("K1_B_DFT")
e("s_cmp_eq_u32 s7, 14"); e("s_cselect_b32 s50, s46, s48"); e("s_cselect_b32 s51, s47, s49")
srd(12, 50, 512*1024); srd(16, 50, 512*1024)
e("s_movk_i32 s37, 1024"); e("s_mov_b32 s38, 0"); e("s_movk_i32 s39, 256")
lab("K1_B_DONE")
e("v_lshrrev_b32 v6, 4, v0"); e("v_lshlrev_b32 v7, 2, v6"); e("v_xor_b32 v7, v7, v0"); e("v_and_b32 v7, 15, v7")
e("s_lshl_b32 s36, s3, 3"); e("v_add_u32 v6, s36, v6"); e("v_mul_lo_u32 v6, v6, s37")
e("v_lshl_add_u32 v4, v7, 4, v6"); e("v_add_u32 v4, s38, v4"); e("v_add_u32 v5, s39, v4")
e("s_lshl_b32 s62, s37, 2")
e("s_lshl_b32 s63, s37, 6")
e("s_lshl_b32 s64, s3, 11")
e("s_mov_b32 s65, 0"); e("s_mov_b32 s66, 0"); e("s_mov_b32 s67, s62")
e("s_lshl_b32 s68, s2, 3"); e("s_add_u32 s68, s68, s3")
e("s_and_b32 s69, s68, 1")
e("s_cmp_eq_u32 s69, 0"); e("s_cselect_b32 s50, s42, s44"); e("s_cselect_b32 s51, s43, s45")
srd(28, 50, 2048*4096)
def cs_src(G, kk32, dst):
    e(f"s_lshr_b32 s36, s{G}, 1"); e("s_lshl_b32 s36, s36, 6"); e(f"s_and_b32 s72, s{G}, 1"); e("s_add_u32 s36, s36, s72")
    e("v_and_b32 v90, 31, v0"); e("v_lshlrev_b32 v90, 1, v90"); e("v_add_u32 v90, s36, v90")
    e("v_lshrrev_b32 v91, 5, v0"); e("v_lshlrev_b32 v91, 4, v91"); e("v_lshl_add_u32 v91, v90, 12, v91")
    e(f"buffer_load_dwordx4 {vr(dst,4)}, v91, s[28:31], s{kk32} offen")
e("s_lshr_b32 s70, s68, 6"); e("s_lshr_b32 s71, s68, 1"); e("s_and_b32 s71, s71, 31"); e("s_lshl_b32 s73, s71, 5")
cs_src(70, 73, 96)
e("v_mov_b32 v92, v90")
e("s_cmp_lt_u32 s2, 32"); e("s_cselect_b32 s74, 1, 0"); e("s_cmp_ge_u32 s3, 6"); e("s_cselect_b32 s74, s74, 0")
e("s_cmp_eq_u32 s74, 0"); e("s_cbranch_scc1 K1_NOX")
e("s_movk_i32 s73, 1024"); cs_src(2, 73, 100)
lab("K1_NOX")
e("s_cmp_lt_u32 s3, 2"); e("s_cbranch_scc0 K1_SL_WD")
e("s_lshl_b32 s36, s2, 1"); e("s_add_u32 s75, s36, s3"); e("v_mov_b32 v93, s75"); e("v_lshrrev_b32 v94, 4, v0")
fold_row(95, 93, 94, 88, 89)
e("v_and_b32 v88, 15, v0"); e("v_lshlrev_b32 v88, 4, v88"); e("v_lshl_add_u32 v89, v95, 10, v88")
for q in range(4): e(f"buffer_load_dwordx4 {vr(104+4*q,4)}, v89, s[8:11], 0 offen offset:{256*q}")
for q in range(4): e(f"buffer_load_dwordx4 {vr(120+4*q,4)}, v88, s[32:35], 0 offen offset:{256*q}")
e("s_branch K1_SL_DONE")
lab("K1_SL_WD")
e("s_cmp_ge_u32 s3, 6"); e("s_cbranch_scc1 K1_SL_DONE"); e("s_cmp_ge_u32 s2, 224"); e("s_cbranch_scc1 K1_SL_DONE")
e("s_sub_u32 s36, s3, 2"); e("s_lshl_b32 s36, s36, 6"); e("v_add_u32 v93, s36, v0"); e("v_lshlrev_b32 v88, 2, v93")
e("s_lshl_b32 s36, s2, 13"); e("s_add_u32 s72, s36, 4096")
for q in range(8): e(f"buffer_load_dword v{104+q}, v88, s[24:27], s{36 if q < 4 else 72} offen offset:{1024*(q&3)}")
lab("K1_SL_DONE")
XB, WB = 0, 49152
def dma(buf):
    for q in range(2):
        e(f"s_add_u32 m0, s64, {XB + buf*16384 + q*1024}"); e("s_nop 0")
        e(f"buffer_load_dwordx4 v{2+q}, s[8:11], s65 offen lds")
    for u in range(2):
        for q in range(2):
            e(f"s_add_u32 m0, s64, {WB + buf*32768 + u*16384 + q*1024}"); e("s_nop 0")
            e(f"buffer_load_dwordx4 v{4+u}, s[{12+4*u}:{15+4*u}], s{66+q} offen lds")
    e("s_add_u32 s65, s65, 128"); e("s_add_u32 s66, s66, s63"); e("s_add_u32 s67, s67, s63")
for b in range(3): dma(b)
e("s_waitcnt vmcnt(18)")
e("v_lshlrev_b32 v87, 4, v0")
def cs_store(G, kk, src, treg):
    e(f"s_mul_i32 s36, s{G}, 33"); e(f"s_add_u32 s36, s36, {kk}"); e("s_lshl_b32 s36, s36, 1"); e("s_add_u32 s36, s36, s69")
    e("s_lshl_b32 s36, s36, 10"); e(f"s_add_u32 s36, s36, {CS_OFF}")
    e(f"v_cmp_gt_u32 vcc, s69, v{treg}"); e("v_mov_b32 v91, 0xbf803f80"); e("s_nop 1")
    for i in range(4): e(f"v_cndmask_b32 v{src+i}, v{src+i}, v91, vcc")
    e(f"buffer_store_dwordx4 {vr(src,4)}, v87, s[20:23], s36 offen")
cs_store(70, "s71", 96, 92)
e("s_cmp_eq_u32 s74, 0"); e("s_cbranch_scc1 K1_NOX2")
cs_store(2, "32", 100, 90)
lab("K1_NOX2")
e("s_cmp_lt_u32 s3, 2"); e("s_cbranch_scc0 K1_SJ_WD")
e("v_mov_b32 v88, 0"); e("v_mov_b32 v89, 0")
for i in range(16):
    e(f"v_lshlrev_b32 v90, 16, v{104+i}"); e(f"v_lshlrev_b32 v91, 16, v{120+i}")
    e(f"v_and_b32 v{104+i}, 0xffff0000, v{104+i}"); e(f"v_and_b32 v{120+i}, 0xffff0000, v{120+i}")
    e("v_fmac_f32 v88, v90, v91"); e("v_add_f32 v89, v89, v90")
    e(f"v_fmac_f32 v88, v{104+i}, v{120+i}"); e(f"v_sub_f32 v89, v89, v{104+i}")
for sh in (8, 4, 2, 1):
    e("s_nop 1")
    e(f"v_add_f32_dpp v88, v88, v88 row_ror:{sh} row_mask:0xf bank_mask:0xf")
    e(f"v_add_f32_dpp v89, v89, v89 row_ror:{sh} row_mask:0xf bank_mask:0xf")
e("v_mul_f32 v88, 0xbfb8aa3b, v88"); e("v_exp_f32 v88, v88"); e("s_nop 0"); e("v_add_f32 v88, 1.0, v88")
e("v_rcp_f32 v88, v88")
e("v_sub_u32 v90, 0x800, v95"); e("v_and_b32 v90, 0x3ff, v90"); e("v_cmp_gt_u32 vcc, 0x400, v95"); e("s_nop 1")
e("v_cndmask_b32 v90, v90, v95, vcc")
e("v_lshrrev_b32 v91, 6, v90"); e("v_lshlrev_b32 v91, 7, v91"); e("v_and_b32 v92, 1, v90"); e("v_lshl_add_u32 v91, v92, 6, v91")
e("v_bfe_u32 v92, v90, 1, 5"); e("v_add_u32 v91, v91, v92"); e("v_lshrrev_b32 v92, 10, v95"); e("v_lshl_add_u32 v91, v92, 5, v91")
e("v_lshlrev_b32 v91, 2, v91"); e(f"s_mov_b32 s36, {GT_OFF}")
e("buffer_store_dword v88, v91, s[20:23], s36 offen")
for g in range(4): e(f"v_readlane_b32 s{76+g}, v89, {16*g}")
e("s_nop 3")
e("v_mov_b32 v90, s78"); e("v_add_f32 v90, s77, v90")
e("s_cmp_eq_u32 s75, 0"); e("s_cselect_b32 s77, 0, s77"); e("s_cselect_b32 s78, 0, s78")
e("v_mov_b32 v91, s76"); e("v_add_f32 v91, s77, v91"); e("v_mov_b32 v92, s79"); e("v_add_f32 v92, s78, v92")
e("v_add_f32 v93, v91, v92"); e("v_sub_f32 v94, v91, v92"); e("v_cvt_pk_bf16_f32 v93, v93, v94")
e("s_lshr_b32 s36, s75, 4"); e("s_lshl_b32 s36, s36, 11"); e("s_and_b32 s72, s75, 8"); e("s_lshl_b32 s72, s72, 6")
e("s_add_u32 s36, s36, s72"); e("s_and_b32 s72, s75, 7"); e("s_lshl_b32 s72, s72, 1"); e("s_add_u32 s36, s36, s72")
e(f"s_add_u32 s36, s36, {EO_OFF + 1024}"); e(f"s_add_u32 s72, s36, {8*33*2048}")
e("v_mov_b32 v94, 0"); e("s_mov_b64 exec, 1")
e("buffer_store_short v93, v94, s[20:23], s36 offen"); e("buffer_store_short_d16_hi v93, v94, s[20:23], s72 offen")
e("s_mov_b64 exec, -1")
e("s_cmp_eq_u32 s75, 0"); e("s_cbranch_scc0 K1_SJ_DONE")
e("v_cvt_pk_bf16_f32 v104, v90, 0"); e("v_mov_b32 v105, 0"); e("v_mov_b32 v106, 0"); e("v_mov_b32 v107, 0")
e("v_cmp_eq_u32 vcc, 0, v0"); e("s_nop 1"); e("v_cndmask_b32 v104, 0, v104, vcc")
e(f"s_mov_b32 s36, {EO_OFF + 32*2048 + 1024}"); e(f"s_mov_b32 s72, {EO_OFF + (8*33+32)*2048 + 1024}")
e("s_mov_b32 exec_lo, 1"); e("s_mov_b32 exec_hi, 1")
e("buffer_store_dwordx4 v[104:107], v87, s[20:23], s36 offen"); e("buffer_store_dwordx4 v[104:107], v87, s[20:23], s72 offen")
e("s_mov_b64 exec, -1")
e("s_branch K1_SJ_DONE")
lab("K1_SJ_WD")
e("s_cmp_ge_u32 s3, 6"); e("s_cbranch_scc1 K1_SJ_DONE"); e("s_cmp_ge_u32 s2, 224"); e("s_cbranch_scc1 K1_SJ_DONE")
e("s_mov_b32 s36, 0x05040100"); e("s_mov_b32 s72, 0x07060302")
for i in range(4):
    e(f"v_perm_b32 v{112+i}, v{105+2*i}, v{104+2*i}, s36"); e(f"v_perm_b32 v{116+i}, v{105+2*i}, v{104+2*i}, s72")
e("s_lshr_b32 s36, s2, 1"); e("s_lshl_b32 s36, s36, 11"); e("s_and_b32 s72, s2, 1"); e("s_lshl_b32 s72, s72, 9")
e("s_add_u32 s36, s36, s72"); e(f"s_add_u32 s36, s36, {WD_OFF}"); e(f"s_mov_b32 s72, {112*2048}")
for c in range(2):
    e("v_lshlrev_b32 v88, 1, v93")
    if c: e("v_add_u32 v88, 1, v88")
    e("v_sub_u32 v89, 0x200, v88"); e("v_and_b32 v89, 0xff, v89"); e("v_cmp_gt_u32 vcc, 0x100, v88"); e("s_nop 1")
    e("v_cndmask_b32 v89, v89, v88, vcc")
    e("v_lshrrev_b32 v90, 5, v89"); e("v_mul_lo_u32 v90, v90, s72"); e("v_lshrrev_b32 v88, 8, v88"); e("v_lshl_add_u32 v90, v88, 10, v90")
    e("v_and_b32 v89, 31, v89"); e(f"v_lshl_add_u32 v{91+c}, v89, 4, v90")
    e(f"buffer_store_dwordx4 {vr(112+4*c,4)}, v{91+c}, s[20:23], s36 offen")
lab("K1_SJ_DONE")
e("v_and_b32 v6, 31, v0"); e("v_lshrrev_b32 v7, 5, v0"); e("v_bfe_u32 v14, v0, 1, 3"); e("v_xor_b32 v7, v7, v14")
e("v_lshlrev_b32 v7, 4, v7"); e("v_lshl_add_u32 v8, v6, 7, v7")
e("v_bfe_u32 v14, v0, 2, 2")
e("v_lshrrev_b32 v6, 5, v0"); e("v_lshl_add_u32 v6, v6, 3, v14"); e("v_lshlrev_b32 v12, 8, v6")
e("v_bfe_u32 v6, v0, 4, 1"); e("v_lshl_add_u32 v12, v6, 5, v12"); e(f"v_add_u32 v12, {WB}, v12")
e("s_cmp_ge_u32 s7, 14"); e("s_cbranch_scc1 K1_DFT")
ACC = 16; FA = 96; FB = 116
def mainloop(dft):
    for k in range(1, 4): e(f"v_xor_b32 v{8+k}, {32*k}, v8")
    e("v_add_u32 v13, 0x10000, v12")
    nx = 4 if dft else 2; nw = 1 if dft else 2; nrd = nx + 2*nw
    def reads(st, ks, F):
        buf = st % 3
        for f in range(nx): e(f"ds_read_b128 {vr(F+4*f,4)}, v{8+ks} offset:{XB + buf*16384 + f*4096}")
        for u in range(nw):
            for rh in range(2):
                off = buf*32768 + u*16384 + ks*4096 + rh*1024
                a = 12
                if off >= 65536: off -= 65536; a = 13
                e(f"ds_read_b64_tr_b16 {vr(F+4*nx+4*u+2*rh,2)}, v{a} offset:{off}")
    def mfmas(F, first):
        for i in range(4):
            c = vr(ACC+16*i, 16)
            if dft: a, b = vr(F+4*i, 4), vr(F+16, 4)
            else: a, b = vr(F+8+4*(i&1), 4), vr(F+4*(i>>1), 4)
            e(f"v_mfma_f32_32x32x16_bf16 {c}, {a}, {b}, {'0' if first else c}")
    e("s_waitcnt vmcnt(12)"); e("s_barrier"); reads(0, 0, FA)
    for st in range(8):
        reads(st, 1, FB); e(f"s_waitcnt lgkmcnt({nrd})"); mfmas(FA, st == 0)
        reads(st, 2, FA); e(f"s_waitcnt lgkmcnt({nrd})"); mfmas(FB, False)
        reads(st, 3, FB); e(f"s_waitcnt lgkmcnt({nrd})"); mfmas(FA, False)
        if st < 7:
            e(f"s_waitcnt vmcnt({6 if st < 6 else 0}) lgkmcnt(0)"); e("s_barrier"); reads(st+1, 0, FA)
            mfmas(FB, False)
            if st + 3 <= 7: dma(st % 3)
        else:
            e("s_waitcnt lgkmcnt(0)"); mfmas(FB, False)
    e("s_nop 15")
e("s_and_b32 s36, s3, 1"); e("s_lshl_b32 s36, s36, 13"); e("v_add_u32 v8, s36, v8")
e("s_lshr_b32 s36, s3, 1"); e("v_xor_b32 v14, s36, v14"); e("v_lshl_add_u32 v12, v14, 6, v12")
e("v_and_b32 v6, 1, v0"); e("v_lshl_add_u32 v12, v6, 4, v12"); e("v_bfe_u32 v6, v0, 1, 1"); e("v_lshl_add_u32 v12, v6, 3, v12")
mainloop(False)
e("s_lshl_b32 s36, s6, 1"); e("s_and_b32 s72, s3, 1"); e("s_add_u32 s36, s36, s72"); e("s_mul_i32 s36, s36, 112")
e("s_lshl_b32 s72, s7, 3"); e("s_add_u32 s36, s36, s72"); e("s_and_b32 s72, s3, 6"); e("s_add_u32 s36, s36, s72")
e("s_lshl_b32 s36, s36, 11")
for fr in range(2):
    g = ACC + 32*fr; u = g + 16
    for h in range(2):
        for i in range(8): e(f"v_mul_f32 v{FA+i}, 0xbfb8aa3b, v{g+8*h+i}")
        for i in range(8): e(f"v_exp_f32 v{FA+i}, v{FA+i}")
        for i in range(8): e(f"v_mul_f32 v{g+8*h+i}, v{g+8*h+i}, v{u+8*h+i}")
        for i in range(8): e(f"v_add_f32 v{FA+i}, 1.0, v{FA+i}")
        for i in range(8): e(f"v_rcp_f32 v{FA+i}, v{FA+i}")
        e("s_nop 0")
        for i in range(8): e(f"v_mul_f32 v{g+8*h+i}, v{g+8*h+i}, v{FA+i}")
        d = FB + 8*fr + 4*h
        for i in range(4): e(f"v_cvt_pk_bf16_f32 v{d+i}, v{g+8*h+2*i}, v{g+8*h+2*i+1}")
        e(f"buffer_store_dwordx4 {vr(d,4)}, v87, s[20:23], s36 offen offset:{2048*h + 1024*fr}")
e("s_endpgm")
lab("K1_DFT")
e("s_and_b32 s36, s3, 3"); e("v_xor_b32 v14, s36, v14"); e("v_lshl_add_u32 v12, v14, 6, v12")
e("v_and_b32 v6, 3, v0"); e("v_lshl_add_u32 v12, v6, 3, v12")
e("s_lshr_b32 s36, s3, 2"); e("s_lshl_b32 s36, s36, 14"); e("v_add_u32 v12, s36, v12")
mainloop(True)
e("s_cmp_eq_u32 s7, 14"); e("s_cselect_b32 s73, 1.0, -1.0")
e("s_mul_i32 s36, s3, 33"); e("s_lshl_b32 s36, s36, 11"); e("s_sub_u32 s72, s7, 14"); e("s_lshl_b32 s72, s72, 10")
e("s_add_u32 s36, s36, s72"); e(f"s_add_u32 s36, s36, {EO_OFF}")
e("s_lshl_b32 s72, s7, 3"); e("s_add_u32 s72, s72, s3"); e("s_cmp_eq_u32 s72, 120")
e("s_cselect_b32 s74, -2, -1"); e("s_mov_b32 s75, s74")
e("s_cmp_eq_u32 s6, 0"); e("s_cbranch_scc0 K1_DFT_GEN")
e(f"v_fma_f32 v100, v{ACC+16}, s73, v{ACC+32}"); e("v_cvt_pk_bf16_f32 v100, v100, 0")
e("v_mov_b32 v101, 0"); e("v_mov_b32 v102, 0"); e("v_mov_b32 v103, 0"); e("v_cmp_gt_u32 vcc, 32, v0"); e("s_nop 1")
e("v_cndmask_b32 v100, 0, v100, vcc"); e(f"v_cndmask_b32 v{ACC+16}, v{ACC+16}, v101, vcc"); e(f"v_cndmask_b32 v{ACC+32}, v{ACC+32}, v101, vcc")
e(f"s_add_u32 s72, s36, {32*2048}"); e(f"s_add_u32 s76, s36, {(8*33+32)*2048}")
e("s_mov_b64 exec, s[74:75]")
e("buffer_store_dwordx4 v[100:103], v87, s[20:23], s72 offen"); e("buffer_store_dwordx4 v[100:103], v87, s[20:23], s76 offen")
e("s_mov_b64 exec, -1")
lab("K1_DFT_GEN")
e("s_lshl_b32 s72, s6, 12"); e("s_add_u32 s36, s36, s72"); e(f"s_add_u32 s72, s36, {8*33*2048}")
for i in range(16):
    e(f"v_fma_f32 v{ACC+i}, v{ACC+16+i}, s73, v{ACC+i}"); e(f"v_fma_f32 v{ACC+48+i}, v{ACC+32+i}, s73, v{ACC+48+i}")
for i in range(16):
    e(f"v_add_f32 v{ACC+16+i}, v{ACC+i}, v{ACC+48+i}"); e(f"v_sub_f32 v{ACC+32+i}, v{ACC+i}, v{ACC+48+i}")
for i in range(16): e(f"v_cvt_pk_bf16_f32 v{FB+i}, v{ACC+16+2*i}, v{ACC+17+2*i}")
e("s_mov_b64 exec, s[74:75]")
for p in range(2):
    for h in range(2): e(f"buffer_store_dwordx4 {vr(FB+8*p+4*h,4)}, v87, s[20:23], s{72 if p else 36} offen offset:{2048*h}")
lab("K1_END")
e("s_endpgm")

L += [".globl k2_kernel", ".p2align 8", ".type k2_kernel,@function"]
lab("k2_kernel")
e("s_cmp_ge_u32 s2, 256"); e("s_cbranch_scc1 K2_END")
e("s_load_dwordx2 s[40:41], s[0:1], 80"); e("s_load_dwordx2 s[42:43], s[0:1], 96")
e("v_lshrrev_b32 v1, 6, v0"); e("v_and_b32 v0, 63, v0"); e("v_readfirstlane_b32 s3, v1")
e("s_and_b32 s4, s2, 7"); e("s_lshr_b32 s5, s2, 3")
if K2MAP == 'A':
    e("s_lshl_b32 s6, s4, 2"); e("s_and_b32 s7, s5, 3"); e("s_add_u32 s6, s6, s7"); e("s_lshr_b32 s7, s5, 2")
else:
    e("s_lshr_b32 s6, s4, 1"); e("s_lshl_b32 s6, s6, 3"); e("s_and_b32 s7, s5, 7"); e("s_add_u32 s6, s6, s7")
    e("s_and_b32 s7, s4, 1"); e("s_lshl_b32 s7, s7, 2"); e("s_lshr_b32 s5, s5, 3"); e("s_add_u32 s7, s7, s5")
e("v_lshlrev_b32 v1, 4, v0")
e("s_mul_i32 s12, s3, 28")
e("s_mul_i32 s13, s6, 112"); e("s_add_u32 s13, s13, s12"); e("s_lshl_b32 s13, s13, 11")
e("s_mul_i32 s14, s7, 112"); e("s_add_u32 s14, s14, s12"); e("s_lshl_b32 s14, s14, 11"); e(f"s_add_u32 s14, s14, {WD_OFF}")
e("s_lshl_b32 s12, s3, 3")
e("s_mul_i32 s15, s6, 33"); e("s_add_u32 s15, s15, s12"); e("s_lshl_b32 s15, s15, 11"); e(f"s_add_u32 s15, s15, {CS_OFF}")
e("s_and_b32 s16, s6, 1"); e("s_lshl_b32 s16, s16, 3"); e("s_add_u32 s16, s16, s7"); e("s_mul_i32 s16, s16, 33")
e("s_add_u32 s16, s16, s12"); e("s_lshl_b32 s16, s16, 11"); e(f"s_add_u32 s16, s16, {EO_OFF}")
e("s_cmp_eq_u32 s3, 3"); e("s_cselect_b32 s17, 0, 0x40000000")
e("s_waitcnt lgkmcnt(0)")
srd(8, 42, WS_SIZE); srd(20, 40, 2048*1024)
NS = 37
def k2load(s):
    r = 16*(s % RING)
    if s < 28: a, b, i = 13, 14, s
    else: a, b, i = 15, 16, s - 28
    if s == 36: e("s_add_u32 s15, s15, s17"); e("s_add_u32 s16, s16, s17")
    o = 2048*(i & 1)
    for f in range(2): e(f"buffer_load_dwordx4 {ar(r+4*f,4)}, v1, s[8:11], s{a} offen offset:{o+1024*f}")
    for f in range(2): e(f"buffer_load_dwordx4 {ar(r+8+4*f,4)}, v1, s[8:11], s{b} offen offset:{o+1024*f}")
    if i & 1: e(f"s_add_u32 s{a}, s{a}, 4096"); e(f"s_add_u32 s{b}, s{b}, 4096")
GV = 160
e("v_lshrrev_b32 v2, 5, v0"); e("v_lshlrev_b32 v2, 4, v2"); e("s_lshl_b32 s18, s6, 8"); e(f"s_add_u32 s18, s18, {GT_OFF}")
for s in range(RING): k2load(s)
FACC, DACC = 32, 96
for s in range(NS):
    left = min(NS, s + RING) - s - 1
    e(f"s_waitcnt vmcnt({4*left + (8 if s + RING > NS else 0)})")
    r = 16*(s % RING); base = FACC if s < 28 else DACC
    for i in range(4):
        c = vr(base+16*i, 16)
        e(f"v_mfma_f32_32x32x16_bf16 {c}, {ar(r+4*(i>>1),4)}, {ar(r+8+4*(i&1),4)}, {'0' if s in (0,28) else c}")
    if s + RING < NS:
        k2load(s + RING)
    if s + RING == NS:
        for q in range(8): e(f"buffer_load_dwordx4 {vr(GV+4*q,4)}, v2, s[8:11], s18 offen offset:{32*q}")
e("s_waitcnt vmcnt(0)")
e("s_cmp_eq_u32 s7, 0"); e("s_cselect_b32 s24, 1, 0"); e("s_mov_b32 s25, s24")
e("s_cmp_eq_u32 s6, 0"); e("s_cselect_b32 s26, -1, 0"); e("s_mov_b32 s27, 0")
e("s_nop 15")
PP, PQ, QP, QQ = DACC, DACC+16, DACC+32, DACC+48
for i in range(16):
    e(f"v_sub_f32 v4, v{PP+i}, v{QQ+i}"); e(f"v_add_f32 v5, v{PP+i}, v{QQ+i}")
    e(f"v_cndmask_b32 v6, v4, v{PP+i}, s[24:25]"); e(f"v_cndmask_b32 v7, v5, v{PQ+i}, s[24:25]")
    e(f"v_cndmask_b32 v8, v5, v{PP+i}, s[24:25]"); e(f"v_cndmask_b32 v9, v4, v{PQ+i}, s[24:25]")
    if i == 0:
        e(f"v_cndmask_b32 v4, v{PP}, v{PQ}, s[24:25]"); e(f"v_cndmask_b32 v5, v{QP}, v{QQ}, s[24:25]")
        e(f"v_cndmask_b32 v6, v6, v{PP}, s[26:27]"); e(f"v_cndmask_b32 v7, v7, v4, s[26:27]")
        e(f"v_cndmask_b32 v8, v8, v{QP}, s[26:27]"); e(f"v_cndmask_b32 v9, v9, v5, s[26:27]")
    for q in range(4): e(f"v_sub_f32 v{6+q}, v{6+q}, v{FACC+16*q+i}")
    for q in range(4): e(f"v_fmac_f32 v{FACC+16*q+i}, v{GV+16*(q>>1)+i}, v{6+q}")
e("s_lshl_b32 s12, s3, 12"); e("v_add_u32 v2, s12, v1")
for qd in range(4):
    for q in range(4): e(f"ds_write_b128 v2, {vr(FACC+16*qd+4*q,4)} offset:{qd*16384+q*1024}")
e("s_lshl_b32 s12, s3, 14"); e("v_add_u32 v2, s12, v1")
e("v_and_b32 v3, 31, v0"); e("s_lshl_b32 s12, s7, 5"); e("v_add_u32 v3, s12, v3")
e("v_sub_u32 v4, 0x200, v3"); e("v_mov_b32 v5, 0x100"); e("v_cndmask_b32 v4, v4, v5, s[24:25]")
e("s_and_b32 s12, s3, 1"); e("s_cmp_eq_u32 s12, 1"); e("s_cselect_b64 s[28:29], -1, 0"); e("v_cndmask_b32 v3, v3, v4, s[28:29]")
e("s_lshr_b32 s12, s6, 1"); e("s_lshl_b32 s12, s12, 6"); e("s_and_b32 s13, s6, 1"); e("s_add_u32 s12, s12, s13")
e("v_lshrrev_b32 v4, 5, v0"); e("v_lshlrev_b32 v4, 3, v4"); e("v_add_u32 v4, s12, v4")
e("v_sub_u32 v5, 0x800, v4"); e("s_movk_i32 s12, 0x800"); e("s_cmp_ge_u32 s3, 2"); e("s_cselect_b64 s[28:29], -1, 0")
e("s_cselect_b32 s12, 0xfffff800, s12"); e("s_mul_i32 s13, s12, 5"); e("s_and_b64 s[26:27], s[26:27], s[28:29]")
e("v_cndmask_b32 v4, v4, v5, s[28:29]"); e("v_lshlrev_b32 v3, 1, v3"); e("v_lshl_add_u32 v4, v4, 10, v3")
e("v_add_u32 v5, 0x100000, v3"); e("v_cndmask_b32 v5, v4, v5, s[26:27]")
e("s_waitcnt lgkmcnt(0)"); e("s_barrier")
for w in range(4):
    for q in range(4): e(f"ds_read_b128 {vr(FACC+16*w+4*q,4)}, v2 offset:{w*4096+q*1024}")
e("s_waitcnt lgkmcnt(8)")
for i in range(16): e(f"v_add_f32 v{FACC+i}, v{FACC+i}, v{FACC+16+i}")
e("s_waitcnt lgkmcnt(0)")
for i in range(16): e(f"v_add_f32 v{FACC+32+i}, v{FACC+32+i}, v{FACC+48+i}")
for i in range(16): e(f"v_add_f32 v{FACC+i}, v{FACC+i}, v{FACC+32+i}")
for i in range(8): e(f"v_cvt_pk_bf16_f32 v{FACC+16+i}, v{FACC+2*i}, v{FACC+2*i+1}")
for i in range(16):
    if i: e(f"v_add_u32 v{6+i}, s{13 if (i & 3) == 0 else 12}, v{4 if i == 1 else 5+i}")
    e(f"buffer_store_short{'_d16_hi' if i & 1 else ''} v{FACC+16+i//2}, v{5 if i == 0 else 6+i}, s[20:23], 0 offen")
lab("K2_END")
e("s_endpgm")

L.append('.section .rodata,"a"')
for nm, nv, ao in (("k1_kernel", 136, 136), ("k2_kernel", 192 + 16*RING, 192)):
    L += [".p2align 6", f".amdhsa_kernel {nm}", f"  .amdhsa_next_free_vgpr {nv}", "  .amdhsa_next_free_sgpr 96",
          f"  .amdhsa_accum_offset {ao}", "  .amdhsa_group_segment_fixed_size 0", "  .amdhsa_kernarg_size 104",
          "  .amdhsa_user_sgpr_count 2", "  .amdhsa_user_sgpr_kernarg_segment_ptr 1",
          "  .amdhsa_system_sgpr_workgroup_id_x 1", ".end_amdhsa_kernel"]
open(sys.argv[1], 'w').write("\n".join(L) + "\n")
```

```python
import sys
OPT = dict(a.split('=') for a in sys.argv[2:])
NAME = "gated_mix__spectral_fnet__swiglu_ffn__prompt"
KN = NAME + "_kernel"
L = []
def e(s): L.append("    " + s)
def lab(s): L.append(s + ":")
H_OFF = 0
WD_OFF = H_OFF + 32*112*2048
EO_OFF = WD_OFF + 8*112*2048
GT_OFF = EO_OFF + 16*33*2048
FL_OFF = GT_OFF + 8192
TS = int(OPT.get('ts', 0)); TS_OFF = 12427264
WS_SIZE = TS_OFF + 65536 if TS else FL_OFF + 2048
def srd(d, p, n):
    e(f"s_mov_b32 s{d}, s{p}"); e(f"s_mov_b32 s{d+1}, s{p+1}"); e(f"s_mov_b32 s{d+2}, {n}"); e(f"s_mov_b32 s{d+3}, 0x00020000")
def vr(a, n): return f"v[{a}:{a+n-1}]"
def ar(a, n): return f"a[{a}:{a+n-1}]"
def stamp(i):
    if TS: e(f"s_memrealtime s[{84+2*i}:{85+2*i}]")
for l in open('cdna_kernels/' + NAME + '.s.ref').read().split('\n'):
    if l.startswith('; @launch'): break
    L.append(l)
L.append(f"; @launch {'kernel=' + KN + ' ' if TS else ''}grid=(256,1,1) block=(256,1,1) lds=147456")
L += ['.amdgcn_target "amdgcn-amd-amdhsa--gfx950"', ".text", f".globl {KN}", ".p2align 8", f".type {KN},@function"]
lab(KN)
e("s_cmp_ge_u32 s2, 256"); e("s_cbranch_scc1 K_END"); stamp(0)
e("s_load_dwordx2 s[40:41], s[0:1], 0")
e("s_load_dwordx4 s[44:47], s[0:1], 24")
e("s_load_dwordx8 s[52:59], s[0:1], 48")
e("s_load_dwordx4 s[60:63], s[0:1], 80")
e("s_load_dwordx2 s[42:43], s[0:1], 96")
e("v_lshrrev_b32 v1, 6, v0"); e("v_and_b32 v0, 63, v0"); e("v_readfirstlane_b32 s3, v1")
e("s_and_b32 s4, s2, 7"); e("s_lshr_b32 s5, s2, 3")
e("s_and_b32 s6, s4, 1"); e("s_lshl_b32 s6, s6, 3"); e("s_and_b32 s7, s5, 7"); e("s_add_u32 s6, s6, s7")
e("s_lshr_b32 s7, s4, 1"); e("s_lshl_b32 s7, s7, 2"); e("s_lshr_b32 s36, s5, 3"); e("s_add_u32 s7, s7, s36")
e("s_lshl_b32 s64, s6, 6"); e("s_lshr_b32 s36, s3, 1"); e("s_add_u32 s64, s64, s36"); e("s_lshl_b32 s37, s6, 5")
e("s_lshl_b32 s66, s36, 10"); e("s_add_u32 s38, s3, 1"); e("s_lshr_b32 s38, s38, 1")
e("s_cmp_ge_u32 s7, 14"); e("s_cselect_b64 s[68:69], -1, 0"); e("s_cselect_b32 s64, s37, s64"); e("s_cselect_b32 s66, s66, 0")
e("s_cselect_b32 s38, s38, s3"); e("s_movk_i32 s67, 0x400"); e("s_cselect_b32 s67, 0x200, s67")
e("s_movk_i32 s37, 3584"); e("s_cselect_b32 s37, 0x400, s37"); e("s_cselect_b32 s39, 0x100, 0")
e("s_lshl_b32 s70, s7, 8"); e("s_cmp_ge_u32 s7, 14"); e("s_cselect_b32 s70, 0, s70")
e("s_and_b32 s38, s38, 1"); e("s_cselect_b32 s65, -1, 1"); e("s_cselect_b32 s67, s67, 0")
e("v_lshrrev_b32 v8, 3, v0"); e("v_and_b32 v9, 3, v8"); e("v_and_b32 v10, 4, v8"); e("v_lshl_add_u32 v9, v10, 1, v9")
e("v_lshlrev_b32 v8, 1, v8"); e("v_cndmask_b32 v8, v8, v9, s[68:69]"); e("v_add_u32 v8, s64, v8")
e("v_lshrrev_b32 v10, 4, v0"); e("v_xor_b32 v11, v10, v0"); e("v_and_b32 v11, 7, v11"); e("v_lshlrev_b32 v11, 4, v11")
e("v_cmp_eq_u32 vcc, 0, v8"); e("v_mov_b32 v12, s67"); e("v_xor_b32 v13, 64, v11")
for q in range(4):
    if q == 0: e("v_cndmask_b32 v9, v8, v12, vcc")
    else:
        e(f"s_cmp_ge_u32 s7, 14"); e(f"s_cselect_b32 s36, {(4,16,20)[q-1]}, {16*q}"); e("v_add_u32 v9, s36, v8")
    e("v_mul_lo_u32 v9, v9, s65"); e("v_add_u32 v9, s66, v9"); e("v_and_b32 v9, 0x7ff, v9")
    e(f"v_lshl_add_u32 v{2+q}, v9, 10, v{13 if q & 1 else 11}")
e("v_lshlrev_b32 v9, 2, v10"); e("v_xor_b32 v9, v9, v0"); e("v_and_b32 v9, 15, v9")
e("s_lshl_b32 s36, s3, 4"); e("v_add_u32 v10, s36, v10"); e("v_mul_lo_u32 v10, v10, s37")
e("v_lshl_add_u32 v6, v9, 4, v10"); e("v_add_u32 v6, s70, v6"); e("v_add_u32 v7, s39, v6")
e("s_lshl_b32 s71, s37, 2"); e("s_mul_i32 s72, s37, 52"); e("s_lshl_b32 s73, s3, 12")
e("s_mov_b32 s74, 0"); e("s_mov_b32 s75, 0")
e("s_lshl_b32 s37, s37, 9")
e("s_waitcnt lgkmcnt(0)")
srd(8, 40, 2048*1024)
e("s_cmp_eq_u32 s7, 14"); e("s_cselect_b32 s50, s44, s46"); e("s_cselect_b32 s51, s45, s47")
e("s_cmp_ge_u32 s7, 14"); e("s_cselect_b32 s48, s50, s52"); e("s_cselect_b32 s49, s51, s53"); e("s_cselect_b32 s50, s50, s54"); e("s_cselect_b32 s51, s51, s55")
srd(12, 48, "s37"); srd(16, 50, "s37")
XB, WB = 0, 49152
def dma_list(buf):
    r = []
    for q in range(4):
        r.append([f"s_add_u32 m0, s73, {XB + buf*16384 + q*1024}", "s_nop 0", f"buffer_load_dwordx4 v{2+q}, s[8:11], s74 offen lds"])
    for q in range(4):
        for u in range(2):
            r.append([f"s_add_u32 m0, s73, {WB + buf*32768 + u*16384 + q*1024}", "s_nop 0", f"buffer_load_dwordx4 v{6+u}, s[{12+4*u}:{15+4*u}], s75 offen lds"])
        r[-1].append(f"s_add_u32 s75, s75, s{71 if q < 3 else 72}")
    r[3].append("s_add_u32 s74, s74, 128")
    return r
def dma(buf):
    for g in dma_list(buf):
        for i in g: e(i)
dma(0)
srd(20, 42, WS_SIZE); srd(24, 56, 1792*1024); srd(32, 58, 1024); srd(28, 62, 256)
e("s_lshl_b32 s36, s3, 6"); e("v_add_u32 v253, s36, v0"); e("v_lshlrev_b32 v252, 2, v253")
e("s_lshl_b32 s36, s2, 13"); e("s_add_u32 s38, s36, 4096")
for q in range(8): e(f"buffer_load_dword v{208+q}, v252, s[24:27], s{36 if q < 4 else 38} offen offset:{1024*(q&3)}")
e("s_cmp_lt_u32 s3, 2"); e("s_cbranch_scc0 SL_DONE")
e("s_lshl_b32 s36, s2, 1"); e("s_add_u32 s76, s36, s3"); e("s_cmp_eq_u32 s76, 0"); e("s_cselect_b32 s36, 0x200, s76"); e("s_sub_u32 s36, 0, s36")
e("v_lshrrev_b32 v250, 4, v0"); e("v_add_u32 v251, 1, v250"); e("v_and_b32 v251, 2, v251"); e("v_cmp_ne_u32 vcc, 0, v251")
e("v_mov_b32 v251, s76"); e("v_mov_b32 v249, s36"); e("v_cndmask_b32 v251, v251, v249, vcc")
e("v_lshrrev_b32 v250, 1, v250"); e("v_lshl_add_u32 v251, v250, 10, v251"); e("v_and_b32 v251, 0x7ff, v251")
e("v_and_b32 v250, 15, v0"); e("v_lshlrev_b32 v250, 4, v250"); e("v_lshl_add_u32 v249, v251, 10, v250")
for q in range(4): e(f"buffer_load_dwordx4 {vr(216+4*q,4)}, v249, s[8:11], 0 offen offset:{256*q}")
for q in range(4): e(f"buffer_load_dwordx4 {vr(232+4*q,4)}, v250, s[32:35], 0 offen offset:{256*q}")
lab("SL_DONE")
dma(1); dma(2)
e("v_lshlrev_b32 v1, 4, v0")
e("s_lshl_b32 s77, s6, 4"); e("s_add_u32 s77, s77, s7"); e("s_lshl_b32 s36, s6, 1"); e("s_add_u32 s36, s36, s7"); e("s_add_u32 s36, s36, 242")
e("s_cmp_ge_u32 s7, 14"); e("s_cselect_b32 s77, s36, s77"); e("s_lshl_b32 s77, s77, 2"); e(f"s_add_u32 s77, s77, {FL_OFF}")
e("v_and_b32 v14, 31, v0"); e("v_lshrrev_b32 v15, 5, v0"); e("v_bfe_u32 v9, v0, 1, 3"); e("v_xor_b32 v9, v15, v9")
e("v_lshlrev_b32 v9, 4, v9"); e("v_lshl_add_u32 v8, v14, 7, v9")
for k in range(1, 4): e(f"v_xor_b32 v{8+k}, {32*k}, v8")
e("v_bfe_u32 v14, v0, 2, 2"); e("v_lshl_add_u32 v15, v15, 3, v14"); e("v_lshlrev_b32 v12, 8, v15")
e("v_xor_b32 v14, s3, v14"); e("v_lshl_add_u32 v12, v14, 6, v12"); e("v_bfe_u32 v14, v0, 4, 1"); e("v_lshl_add_u32 v12, v14, 5, v12")
e("v_and_b32 v14, 3, v0"); e("v_bfrev_b32 v15, v14"); e("v_lshrrev_b32 v15, 30, v15"); e("v_cndmask_b32 v14, v15, v14, s[68:69]")
e("v_lshl_add_u32 v12, v14, 3, v12"); e(f"v_add_u32 v12, {WB}, v12"); e("v_add_u32 v13, 0x10000, v12")
e("s_lshr_b32 s78, s4, 1"); e("s_lshl_b32 s78, s78, 3"); e("s_and_b32 s36, s5, 3"); e("s_lshl_b32 s36, s36, 1"); e("s_add_u32 s78, s78, s36")
e("s_and_b32 s36, s4, 1"); e("s_add_u32 s78, s78, s36"); e("s_lshr_b32 s79, s5, 2")
e("s_mul_i32 s36, s3, 28"); e("s_mul_i32 s80, s78, 112"); e("s_add_u32 s80, s80, s36"); e("s_lshl_b32 s80, s80, 11")
e("s_mul_i32 s81, s79, 112"); e("s_add_u32 s81, s81, s36"); e("s_lshl_b32 s81, s81, 11"); e(f"s_add_u32 s81, s81, {WD_OFF}")
stamp(1)
e("s_waitcnt vmcnt(24)")
e("v_mov_b32 v248, 0"); e("s_mov_b64 exec, 1"); e("buffer_store_dword v248, v248, s[20:23], s77 offen sc1"); e("s_mov_b64 exec, -1")
e("s_cmp_ge_u32 s2, 224"); e("s_cbranch_scc1 SJ_GATE")
e("s_mov_b32 s36, 0x05040100"); e("s_mov_b32 s38, 0x07060302")
for i in range(4): e(f"v_perm_b32 v{16+i}, v{209+2*i}, v{208+2*i}, s36"); e(f"v_perm_b32 v{20+i}, v{209+2*i}, v{208+2*i}, s38")
e("s_lshr_b32 s36, s2, 1"); e("s_lshl_b32 s36, s36, 11"); e("s_and_b32 s38, s2, 1"); e("s_lshl_b32 s38, s38, 9")
e("s_add_u32 s36, s36, s38"); e(f"s_add_u32 s36, s36, {WD_OFF}"); e(f"s_mov_b32 s38, {112*2048}")
for c in range(2):
    e(f"v_lshl_add_u32 v24, v253, 1, {c}")
    e("v_sub_u32 v25, 0x200, v24"); e("v_cmp_gt_u32 vcc, 0x100, v24"); e("v_and_b32 v25, 0xff, v25"); e("s_nop 0")
    e("v_cndmask_b32 v25, v25, v24, vcc")
    e("v_lshrrev_b32 v26, 5, v25"); e("v_mul_lo_u32 v26, v26, s38"); e("v_lshrrev_b32 v24, 8, v24"); e("v_lshl_add_u32 v26, v24, 10, v26")
    e("v_and_b32 v25, 31, v25"); e(f"v_lshl_add_u32 v{27+c}, v25, 4, v26")
    e(f"buffer_store_dwordx4 {vr(16+4*c,4)}, v{27+c}, s[20:23], s36 offen sc1")
lab("SJ_GATE")
e("s_cmp_lt_u32 s3, 2"); e("s_cbranch_scc0 SJ_DONE")
e("v_mov_b32 v208, 0"); e("v_mov_b32 v209, 0")
for i in range(16):
    e(f"v_lshlrev_b32 v210, 16, v{216+i}"); e(f"v_lshlrev_b32 v211, 16, v{232+i}")
    e(f"v_and_b32 v{216+i}, 0xffff0000, v{216+i}"); e(f"v_and_b32 v{232+i}, 0xffff0000, v{232+i}")
    e("v_fmac_f32 v208, v210, v211"); e("v_add_f32 v209, v209, v210")
    e(f"v_fmac_f32 v208, v{216+i}, v{232+i}"); e(f"v_sub_f32 v209, v209, v{216+i}")
for sh in (8, 4, 2, 1):
    e("s_nop 1")
    e(f"v_add_f32_dpp v208, v208, v208 row_ror:{sh} row_mask:0xf bank_mask:0xf")
    e(f"v_add_f32_dpp v209, v209, v209 row_ror:{sh} row_mask:0xf bank_mask:0xf")
e("v_mul_f32 v208, 0xbfb8aa3b, v208"); e("v_exp_f32 v208, v208"); e("v_sub_u32 v210, 0x800, v251"); e("v_add_f32 v208, 1.0, v208")
e("v_rcp_f32 v208, v208"); e("v_cmp_gt_u32 vcc, 0x400, v251"); e("v_and_b32 v210, 0x3ff, v210"); e("s_nop 0")
e("v_cndmask_b32 v210, v210, v251, vcc")
e("v_lshrrev_b32 v211, 6, v210"); e("v_lshlrev_b32 v211, 7, v211"); e("v_and_b32 v212, 1, v210"); e("v_lshl_add_u32 v211, v212, 6, v211")
e("v_bfe_u32 v212, v210, 1, 5"); e("v_add_u32 v211, v211, v212"); e("v_lshrrev_b32 v212, 10, v251"); e("v_lshl_add_u32 v211, v212, 5, v211")
e("v_lshlrev_b32 v211, 2, v211"); e(f"s_mov_b32 s36, {GT_OFF}")
e("s_mov_b32 exec_lo, 0x10001"); e("s_mov_b32 exec_hi, 0x10001")
e("buffer_store_dword v208, v211, s[20:23], s36 offen sc1"); e("s_mov_b64 exec, -1")
for g in range(4): e(f"v_readlane_b32 s{64+g}, v209, {16*g}")
e("s_nop 3")
e("v_mov_b32 v210, s66"); e("v_add_f32 v210, s65, v210")
e("s_cmp_eq_u32 s76, 0"); e("s_cselect_b32 s65, 0, s65"); e("s_cselect_b32 s66, 0, s66")
e("v_mov_b32 v211, s64"); e("v_add_f32 v211, s65, v211"); e("v_mov_b32 v212, s67"); e("v_add_f32 v212, s66, v212")
e("v_add_f32 v213, v211, v212"); e("v_sub_f32 v214, v211, v212"); e("v_cvt_pk_bf16_f32 v213, v213, v214")
e("s_lshr_b32 s36, s76, 4"); e("s_lshl_b32 s36, s36, 11"); e("s_and_b32 s38, s76, 8"); e("s_lshl_b32 s38, s38, 6")
e("s_add_u32 s36, s36, s38"); e("s_and_b32 s38, s76, 7"); e("s_lshl_b32 s38, s38, 1"); e("s_add_u32 s36, s36, s38")
e(f"s_add_u32 s36, s36, {EO_OFF + 1024}"); e(f"s_add_u32 s38, s36, {8*33*2048}")
e("s_mov_b64 exec, 1")
e("buffer_store_short v213, v248, s[20:23], s36 offen sc1"); e("buffer_store_short_d16_hi v213, v248, s[20:23], s38 offen sc1")
e("s_mov_b64 exec, -1")
e("s_cmp_eq_u32 s76, 0"); e("s_cbranch_scc0 SJ_DONE")
e("v_cvt_pk_bf16_f32 v216, v210, 0"); e("v_cmp_eq_u32 vcc, 0, v0"); e("v_mov_b32 v217, 0"); e("v_mov_b32 v218, 0"); e("v_mov_b32 v219, 0")
e("v_cndmask_b32 v216, 0, v216, vcc")
e(f"s_mov_b32 s36, {EO_OFF + 32*2048 + 1024}"); e(f"s_mov_b32 s38, {EO_OFF + (8*33+32)*2048 + 1024}")
e("s_mov_b32 exec_lo, 1"); e("s_mov_b32 exec_hi, 1")
e("buffer_store_dwordx4 v[216:219], v1, s[20:23], s36 offen sc1"); e("buffer_store_dwordx4 v[216:219], v1, s[20:23], s38 offen sc1")
e("s_mov_b64 exec, -1")
lab("SJ_DONE")
e("v_and_b32 v14, 3, v0"); e("v_lshlrev_b32 v14, 6, v14")
e("v_and_b32 v16, 31, v0"); e("v_lshlrev_b32 v16, 2, v16"); e("v_lshrrev_b32 v17, 5, v0"); e("v_lshlrev_b32 v17, 4, v17")
e("s_lshl_b32 s82, s6, 9"); e(f"s_add_u32 s82, s82, {GT_OFF}"); e("s_lshl_b32 s83, s78, 8"); e(f"s_add_u32 s83, s83, {GT_OFF}")
e("s_cmp_ge_u32 s7, 14"); e("s_cbranch_scc1 P1_DFT")
ACC, FA, FB, GV = 32, 160, 184, 224
def mainloop(dft):
    T = "D" if dft else "F"
    def reads(st, ks, F):
        buf = st % 3; r = []
        for u in range(2):
            for rh in range(2):
                off = buf*32768 + u*16384 + ks*4096 + rh*1024; a = 12
                if off >= 65536: off -= 65536; a = 13
                r.append(f"ds_read_b64_tr_b16 {vr(F+16+4*u+2*rh,2)}, v{a} offset:{off}")
        for f in range(4): r.append(f"ds_read_b128 {vr(F+4*f,4)}, v{8+ks} offset:{XB + buf*16384 + f*4096}")
        return r
    def kstep(F, first, rd, extra):
        for i in range(8):
            c = vr(ACC+16*i, 16); x, w = vr(F+4*(i>>1), 4), vr(F+16+4*(i&1), 4)
            e(f"v_mfma_f32_32x32x16_bf16 {c}, {x if dft else w}, {w if dft else x}, {'0' if first else c}")
            if rd: e(rd[i])
            if extra and (i & 1 or len(extra) > 12):
                for s in extra.pop(0): e(s)
    wd = []
    for s in range(28):
        for f in range(2): wd.append([f"buffer_load_dwordx4 {ar(8*s+4*f,4)}, v1, s[20:23], s81 offen offset:{2048*(s&1)+1024*f} sc1"])
        if s & 1: wd[-1].append("s_add_u32 s81, s81, 4096")
    gl = [[f"buffer_load_dword v{20+f}, v16, s[20:23], s82 offen offset:{128*f} sc1"] for f in range(4)]
    gl += [[f"buffer_load_dwordx4 {vr(GV+4*q,4)}, v17, s[20:23], s83 offen offset:{32*q} sc1"] for q in range(8)]
    wd = gl + wd
    e("s_barrier"); stamp(2)
    for r in reads(0, 0, FA): e(r)
    extra = []
    for st in range(8):
        e("s_waitcnt lgkmcnt(0)"); kstep(FA, st == 0, reads(st, 1, FB), extra)
        e("s_waitcnt lgkmcnt(0)"); kstep(FB, False, reads(st, 2, FA), extra)
        e("s_waitcnt lgkmcnt(0)"); kstep(FA, False, reads(st, 3, FB), extra)
        if st < 7:
            assert st == 6 or not extra
            e(f"s_waitcnt vmcnt({12 if st < 6 else 68 - len(extra)}) lgkmcnt(0)"); e("s_barrier")
            if st == 1:
                e("s_cmp_eq_u32 s3, 0"); e(f"s_cbranch_scc0 NOARR{T}"); e("s_and_b32 s36, s2, 3"); e("s_lshl_b32 s36, s36, 6")
                e("v_mov_b32 v15, 1"); e("s_mov_b64 exec, 1"); e("buffer_atomic_add v15, v248, s[28:31], s36 offen sc1"); e("s_mov_b64 exec, -1")
                lab(f"NOARR{T}")
            if st == 4: e("buffer_load_dword v15, v14, s[28:31], 0 offen sc1")
            if st == 5:
                e("s_mov_b32 s36, 0"); lab(f"C0CHK{T}"); e("v_cmp_ne_u32 vcc, 64, v15"); e(f"s_cbranch_vccz C0OK{T}")
                e("s_sleep 2"); e("buffer_load_dword v15, v14, s[28:31], 0 offen sc1"); e("s_add_u32 s36, s36, 1"); e("s_waitcnt vmcnt(0)")
                e("s_cmp_lt_u32 s36, 0x40000"); e(f"s_cbranch_scc1 C0CHK{T}"); lab(f"C0OK{T}"); extra = wd
            if st + 3 <= 7: extra = dma_list(st % 3)
            kstep(FB, False, reads(st+1, 0, FA), extra)
        else:
            e("s_waitcnt lgkmcnt(0)"); kstep(FB, False, None, extra)
    for g in extra:
        for s in g: e(s)
    stamp(3)
mainloop(False)
e("s_mul_i32 s36, s6, 224"); e("s_lshl_b32 s38, s7, 3"); e("s_add_u32 s36, s36, s38"); e("s_lshl_b32 s38, s3, 1"); e("s_add_u32 s36, s36, s38")
e("s_lshl_b32 s36, s36, 11"); e(f"s_add_u32 s38, s36, {112*2048}")
e("s_waitcnt vmcnt(56)")
for f in range(4): e(f"v_sub_f32 v{20+f}, 1.0, v{20+f}")
e("s_nop 7")
for f in range(4):
    g = ACC + 32*f; u = g + 16
    for h in range(2):
        for i in range(8): e(f"v_mul_f32 v{FA+i}, 0xbfb8aa3b, v{g+8*h+i}")
        for i in range(8): e(f"v_exp_f32 v{FA+i}, v{FA+i}"); e(f"v_mul_f32 v{g+8*h+i}, v{g+8*h+i}, v{u+8*h+i}")
        for i in range(8): e(f"v_add_f32 v{FA+i}, 1.0, v{FA+i}")
        for i in range(8): e(f"v_rcp_f32 v{FA+i}, v{FA+i}"); e(f"v_mul_f32 v{g+8*h+i}, v{g+8*h+i}, v{20+f}")
        for i in range(8): e(f"v_mul_f32 v{g+8*h+i}, v{g+8*h+i}, v{FA+i}")
        d = u + 8*h
        for i in range(4): e(f"v_cvt_pk_bf16_f32 v{d+i}, v{g+8*h+2*i}, v{g+8*h+2*i+1}")
        e(f"buffer_store_dwordx4 {vr(d,4)}, v1, s[20:23], s{38 if f >> 1 else 36} offen offset:{2048*h + 1024*(f&1)} sc1")
lab("P1_DONE")
def csreg(k): return 168 + 8*k if k < 7 else 16 + 8*(k-7)
e("s_lshr_b32 s36, s78, 1"); e("s_lshl_b32 s36, s36, 6"); e("s_and_b32 s38, s78, 1"); e("s_add_u32 s70, s36, s38")
e("v_and_b32 v2, 31, v0"); e("v_lshl_add_u32 v2, v2, 1, s70"); e("v_cmp_eq_u32 s[64:65], 0, v2")
e("v_lshrrev_b32 v3, 5, v0"); e("s_lshl_b32 s36, s3, 7"); e("v_lshl_add_u32 v3, v3, 3, s36"); e("v_mul_lo_u32 v3, v3, v2")
e("v_cvt_f32_u32 v3, v3"); e("v_cvt_f32_u32 v2, v2"); e("v_mul_f32 v3, 0x3a000000, v3"); e("v_mul_f32 v2, 0x3a000000, v2")
e("v_mul_f32 v4, 0x41100000, v2"); e("v_mov_b32 v5, 0xbf803f80")
def csgen(k):
    r = csreg(k)
    e("v_fract_f32 v3, v3")
    for i in range(4):
        e("v_add_f32 v6, v3, v2"); e("v_cos_f32 v7, v3"); e("v_sin_f32 v8, -v3"); e("v_cos_f32 v9, v6"); e("v_sin_f32 v10, -v6")
        e(f"v_add_f32 v3, v6, v{2 if i < 3 else 4}")
        e(f"v_cvt_pk_bf16_f32 v{r+i}, v7, v9"); e(f"v_cvt_pk_bf16_f32 v{r+4+i}, v8, v10")
        e(f"v_cndmask_b32 v{r+4+i}, v{r+4+i}, v5, s[64:65]")
for k in range(3): csgen(k)
e("s_waitcnt vmcnt(0)"); e("s_barrier")
e("v_mov_b32 v11, 1"); e("v_mov_b32 v12, 0"); e("s_cmp_eq_u32 s3, 0"); e("s_cselect_b64 exec, 1, 0"); e("s_cbranch_execz NOFLAG")
e("buffer_store_dword v11, v12, s[20:23], s77 offen sc1")
lab("NOFLAG"); e("s_mov_b64 exec, -1"); stamp(4)
for k in range(3, 9): csgen(k)
e("v_lshlrev_b32 v11, 2, v0"); e("v_add_u32 v11, 0x400, v11"); e("v_subrev_u32 v12, 32, v0"); e("v_min_u32 v12, 13, v12")
e("s_lshr_b32 s36, s78, 1"); e("s_lshl_b32 s36, s36, 6"); e("v_lshl_add_u32 v12, v12, 2, s36"); e("v_cmp_gt_u32 vcc, 32, v0")
e(f"s_mov_b32 s38, {FL_OFF}"); e("s_mov_b32 s36, 0"); e("v_cndmask_b32 v11, v12, v11, vcc")
e("s_and_b32 s82, s78, 1"); e("s_lshl_b32 s82, s82, 3"); e("s_add_u32 s82, s82, s79"); e("s_mul_i32 s82, s82, 33")
e("s_lshl_b32 s39, s3, 3"); e("s_add_u32 s82, s82, s39"); e("s_lshl_b32 s82, s82, 11"); e(f"s_add_u32 s82, s82, {EO_OFF}")
e("s_cmp_eq_u32 s3, 3"); e("s_cselect_b32 s39, 0, 0x40000000")
lab("POLL"); e("buffer_load_dword v12, v11, s[20:23], s38 offen sc1"); e("s_add_u32 s36, s36, 1"); e("s_waitcnt vmcnt(0)")
e("v_cmp_ne_u32 vcc, 1, v12"); e("s_cbranch_vccz POLLOK"); e("s_sleep 1"); e("s_cmp_lt_u32 s36, 0x40000"); e("s_cbranch_scc1 POLL")
lab("POLLOK"); stamp(5)
Q = []
hreg = {}
def ld(tag, dst, sreg, off):
    e(f"buffer_load_dwordx4 {dst}, v1, s[20:23], s{sreg} offen offset:{off} sc1"); Q.append(tag)
nh = [0]
def ldh(kind, base):
    s = nh[0]; nh[0] += 1; hreg[s] = (kind, base)
    for f in range(2): ld(('h', s), (ar if kind == 'a' else vr)(base+4*f, 4), 80, 2048*(s&1)+1024*f)
    if s & 1: e("s_add_u32 s80, s80, 4096")
def wait(tag):
    last = max(i for i, t in enumerate(Q) if t == tag); e(f"s_waitcnt vmcnt({len(Q)-1-last})")
for k in range(9):
    if k == 8: e("s_add_u32 s82, s82, s39")
    for f in range(2): ld(('e', k), vr(96+8*k+4*f, 4), 82, 2048*(k&1)+1024*f)
    if k & 1: e("s_add_u32 s82, s82, 4096")
for k in range(4): ldh('a', 224+8*k)
A2 = 32
for k in range(9):
    wait(('e', k))
    for i in range(4):
        c = vr(A2+16*i, 16); e(f"v_mfma_f32_32x32x16_bf16 {c}, {vr(csreg(k)+4*(i>>1),4)}, {vr(96+8*k+4*(i&1),4)}, {'0' if k == 0 else c}")
    ldh('v', csreg(k)); ldh('v', 96+8*k)
e("s_cmp_eq_u32 s79, 0"); e("s_cselect_b32 s24, 1, 0"); e("s_mov_b32 s25, s24")
e("s_cmp_eq_u32 s78, 0"); e("s_cselect_b32 s26, -1, 0"); e("s_mov_b32 s27, 0"); e("s_nop 7")
PP, PQ, QP, QQ = A2, A2+16, A2+32, A2+48
for i in range(16):
    e(f"v_sub_f32 v4, v{PP+i}, v{QQ+i}"); e(f"v_add_f32 v5, v{PP+i}, v{QQ+i}")
    e(f"v_cndmask_b32 v6, v4, v{PP+i}, s[24:25]"); e(f"v_cndmask_b32 v7, v5, v{PQ+i}, s[24:25]")
    e(f"v_cndmask_b32 v8, v5, v{PP+i}, s[24:25]"); e(f"v_cndmask_b32 v9, v4, v{PQ+i}, s[24:25]")
    if i == 0:
        e(f"v_cndmask_b32 v4, v{PP}, v{PQ}, s[24:25]"); e(f"v_cndmask_b32 v5, v{QP}, v{QQ}, s[24:25]")
        e(f"v_cndmask_b32 v6, v6, v{PP}, s[26:27]"); e(f"v_cndmask_b32 v7, v7, v4, s[26:27]")
        e(f"v_cndmask_b32 v8, v8, v{QP}, s[26:27]"); e(f"v_cndmask_b32 v9, v9, v5, s[26:27]")
    for q in range(4): e(f"v_mul_f32 v{A2+16*q+i}, v{GV+16*(q>>1)+i}, v{6+q}")
for k in range(4): ldh('v', GV+8*k)
for s in range(28):
    wait(('h', s)); kind, base = hreg[s]
    for i in range(4):
        c = vr(A2+16*i, 16); e(f"v_mfma_f32_32x32x16_bf16 {c}, {(ar if kind == 'a' else vr)(base+4*(i>>1),4)}, {ar(8*s+4*(i&1),4)}, {c}")
    if nh[0] < 28: ldh(kind, base)
stamp(6)
srd(8, 60, 2048*1024)
e("s_lshl_b32 s12, s3, 12"); e("v_add_u32 v2, s12, v1")
e("v_and_b32 v3, 31, v0"); e("s_lshl_b32 s12, s79, 5"); e("v_add_u32 v3, s12, v3")
e("v_sub_u32 v4, 0x200, v3"); e("v_mov_b32 v5, 0x100"); e("v_cndmask_b32 v4, v4, v5, s[24:25]")
e("s_and_b32 s12, s3, 1"); e("s_cselect_b64 s[28:29], -1, 0"); e("v_cndmask_b32 v3, v3, v4, s[28:29]")
e("v_lshrrev_b32 v4, 5, v0"); e("v_lshl_add_u32 v4, v4, 3, s70")
for qd in range(4):
    for q in range(4): e(f"ds_write_b128 v2, {vr(A2+16*qd+4*q,4)} offset:{qd*16384+q*1024}")
e("s_lshl_b32 s12, s3, 14"); e("v_add_u32 v2, s12, v1")
e("v_sub_u32 v5, 0x800, v4"); e("s_movk_i32 s12, 0x800"); e("s_cmp_ge_u32 s3, 2"); e("s_cselect_b64 s[28:29], -1, 0")
e("s_cselect_b32 s12, 0xfffff800, s12"); e("s_mul_i32 s13, s12, 5"); e("s_and_b64 s[26:27], s[26:27], s[28:29]")
e("v_cndmask_b32 v4, v4, v5, s[28:29]"); e("v_lshlrev_b32 v3, 1, v3"); e("v_lshl_add_u32 v4, v4, 10, v3")
e("v_add_u32 v5, 0x100000, v3"); e("v_cndmask_b32 v5, v4, v5, s[26:27]")
for i in range(1, 16): e(f"v_add_u32 v{6+i}, s{13 if (i & 3) == 0 else 12}, v{4 if i == 1 else 5+i}")
e("s_waitcnt lgkmcnt(0)"); e("s_barrier")
for q in range(4):
    for w in range(4): e(f"ds_read_b128 {vr(A2+16*w+4*q,4)}, v2 offset:{w*4096+q*1024}")
for q in range(4):
    e(f"s_waitcnt lgkmcnt({12-4*q})")
    for i in range(4*q, 4*q+4): e(f"v_add_f32 v{A2+i}, v{A2+i}, v{A2+16+i}"); e(f"v_add_f32 v{A2+32+i}, v{A2+32+i}, v{A2+48+i}")
    for i in range(4*q, 4*q+4): e(f"v_add_f32 v{A2+i}, v{A2+i}, v{A2+32+i}")
    for i in range(2*q, 2*q+2): e(f"v_cvt_pk_bf16_f32 v{96+i}, v{A2+2*i}, v{A2+2*i+1}")
    for i in range(4*q, 4*q+4): e(f"buffer_store_short{'_d16_hi' if i & 1 else ''} v{96+i//2}, v{5 if i == 0 else 6+i}, s[8:11], 0 offen")
if TS:
    e("s_waitcnt vmcnt(0)"); stamp(7); e("s_waitcnt lgkmcnt(0)"); e("s_mov_b64 exec, 1")
    for i in range(8): e(f"v_mov_b32 v{8+i}, s{84+2*i}")
    e("v_mov_b32 v16, 0"); e("s_lshl_b32 s36, s2, 3"); e("s_add_u32 s36, s36, s3"); e("s_lshl_b32 s36, s36, 5"); e(f"s_add_u32 s36, s36, {TS_OFF}")
    e("buffer_store_dwordx4 v[8:11], v16, s[20:23], s36 offen"); e("buffer_store_dwordx4 v[12:15], v16, s[20:23], s36 offen offset:16")
lab("K_END")
e("s_endpgm")
lab("P1_DFT")
mainloop(True)
e("s_cmp_eq_u32 s7, 14"); e("s_cselect_b32 s64, 1.0, -1.0")
e("s_mul_i32 s36, s3, 33"); e("s_lshl_b32 s36, s36, 11"); e("s_sub_u32 s38, s7, 14"); e("s_lshl_b32 s38, s38, 10")
e("s_add_u32 s36, s36, s38"); e(f"s_add_u32 s36, s36, {EO_OFF}")
e("s_lshl_b32 s38, s7, 2"); e("s_add_u32 s38, s38, s3"); e("s_cmp_eq_u32 s38, 60"); e("s_cselect_b32 s66, -2, -1"); e("s_mov_b32 s67, s66")
e("v_mov_b32 v25, 0"); e("v_mov_b32 v26, 0"); e("v_mov_b32 v27, 0"); e("v_cmp_gt_u32 vcc, 32, v0"); e("s_nop 7")
for u in range(2):
    R = [ACC + 32*f + 16*u for f in range(4)]
    e("s_cmp_eq_u32 s6, 0"); e(f"s_cbranch_scc0 DGEN{u}")
    e(f"v_fma_f32 v24, v{R[1]}, s64, v{R[2]}"); e("v_cvt_pk_bf16_f32 v24, v24, 0")
    e("v_cndmask_b32 v24, 0, v24, vcc"); e(f"v_cndmask_b32 v{R[1]}, v{R[1]}, v25, vcc"); e(f"v_cndmask_b32 v{R[2]}, v{R[2]}, v25, vcc")
    e(f"s_add_u32 s38, s36, {32*2048}"); e(f"s_add_u32 s39, s36, {(8*33+32)*2048}")
    if u == 0: e("s_mov_b64 exec, s[66:67]")
    e("buffer_store_dwordx4 v[24:27], v1, s[20:23], s38 offen sc1"); e("buffer_store_dwordx4 v[24:27], v1, s[20:23], s39 offen sc1")
    e("s_mov_b64 exec, -1")
    lab(f"DGEN{u}")
    e("s_lshl_b32 s38, s6, 12"); e("s_add_u32 s38, s36, s38"); e(f"s_add_u32 s39, s38, {8*33*2048}")
    for i in range(16): e(f"v_fma_f32 v{R[0]+i}, v{R[1]+i}, s64, v{R[0]+i}"); e(f"v_fma_f32 v{R[3]+i}, v{R[2]+i}, s64, v{R[3]+i}")
    for i in range(16): e(f"v_add_f32 v{R[1]+i}, v{R[0]+i}, v{R[3]+i}"); e(f"v_sub_f32 v{R[2]+i}, v{R[0]+i}, v{R[3]+i}")
    for p in range(2):
        for i in range(8): e(f"v_cvt_pk_bf16_f32 v{R[0]+8*p+i}, v{R[1+p]+2*i}, v{R[1+p]+2*i+1}")
    if u == 0: e("s_mov_b64 exec, s[66:67]")
    for p in range(2):
        for h in range(2): e(f"buffer_store_dwordx4 {vr(R[0]+8*p+4*h,4)}, v1, s[20:23], s{38+p} offen offset:{2048*h} sc1")
    e("s_mov_b64 exec, -1"); e(f"s_add_u32 s36, s36, {4*33*2048}")
e("s_branch P1_DONE")
L += ['.section .rodata,"a"', ".p2align 6", f".amdhsa_kernel {KN}", "  .amdhsa_next_free_vgpr 512", "  .amdhsa_next_free_sgpr 102",
      "  .amdhsa_accum_offset 256", "  .amdhsa_group_segment_fixed_size 0", "  .amdhsa_kernarg_size 104",
      "  .amdhsa_user_sgpr_count 2", "  .amdhsa_user_sgpr_kernarg_segment_ptr 1", "  .amdhsa_system_sgpr_workgroup_id_x 1", ".end_amdhsa_kernel"]
open(sys.argv[1], 'w').write("\n".join(L) + "\n")
```

```python
import sys
OPT = dict(a.split('=') for a in sys.argv[2:])
NAME = "gated_mix__spectral_fnet__swiglu_ffn__prompt"
KN = NAME + "_kernel"
L = []
NCS = int(OPT.get('ncs', 2))
NW2 = int(OPT.get('nw2', 0))
NWD = int(OPT.get('nwd', 36))
ROT = int(OPT.get('rot', 0))
def e(s): L.append("    " + s)
def lab(s): L.append(s + ":")
H_OFF = 0
WD_OFF = H_OFF + 32*112*2048
EO_OFF = WD_OFF + 8*112*2048
GT_OFF = EO_OFF + 16*33*2048
FL_OFF = GT_OFF + 8192
TS = int(OPT.get('ts', 0)); TS_OFF = 12427264
WS_SIZE = TS_OFF + 65536 if TS else FL_OFF + 2048
def srd(d, p, n):
    e(f"s_mov_b32 s{d}, s{p}"); e(f"s_mov_b32 s{d+1}, s{p+1}"); e(f"s_mov_b32 s{d+2}, {n}"); e(f"s_mov_b32 s{d+3}, 0x00020000")
def vr(a, n): return f"v[{a}:{a+n-1}]"
def ar(a, n): return f"a[{a}:{a+n-1}]"
def stamp(i, p=0):
    if OPT.get('pst') and i in (1, 4, 5, 6, 7) and not p: return
    if TS and (OPT.get('pst') or not p): e(f"s_memrealtime s[{84+2*i}:{85+2*i}]")
for l in open('cdna_kernels/' + NAME + '.s.ref').read().split('\n'):
    if l.startswith('; @launch'): break
    L.append(l)
L.append(f"; @launch {'kernel=' + KN + ' ' if TS else ''}grid=(256,1,1) block=(256,1,1) lds=147456")
L += ['.amdgcn_target "amdgcn-amd-amdhsa--gfx950"', ".text", f".globl {KN}", ".p2align 8", f".type {KN},@function"]
lab(KN)
e("s_cmp_ge_u32 s2, 256"); e("s_cbranch_scc1 K_END"); stamp(0)
e("s_load_dwordx2 s[40:41], s[0:1], 0")
e("s_load_dwordx4 s[44:47], s[0:1], 24")
e("s_load_dwordx8 s[52:59], s[0:1], 48")
e("s_load_dwordx4 s[60:63], s[0:1], 80")
e("s_load_dwordx2 s[42:43], s[0:1], 96")
e("v_lshrrev_b32 v1, 6, v0"); e("v_and_b32 v0, 63, v0"); e("v_readfirstlane_b32 s3, v1")
e("s_and_b32 s4, s2, 7"); e("s_lshr_b32 s5, s2, 3")
e("s_and_b32 s6, s4, 1"); e("s_lshl_b32 s6, s6, 3"); e("s_and_b32 s7, s5, 7"); e("s_add_u32 s6, s6, s7")
e("s_lshr_b32 s7, s4, 1"); e("s_lshl_b32 s7, s7, 2"); e("s_lshr_b32 s36, s5, 3"); e("s_add_u32 s7, s7, s36")
e("s_lshl_b32 s64, s6, 6"); e("s_lshr_b32 s36, s3, 1"); e("s_add_u32 s64, s64, s36"); e("s_lshl_b32 s37, s6, 5")
e("s_lshl_b32 s66, s36, 10"); e("s_add_u32 s38, s3, 1"); e("s_lshr_b32 s38, s38, 1")
e("s_cmp_ge_u32 s7, 14"); e("s_cselect_b64 s[68:69], -1, 0"); e("s_cselect_b32 s64, s37, s64"); e("s_cselect_b32 s66, s66, 0")
e("s_cselect_b32 s38, s38, s3"); e("s_movk_i32 s67, 0x400"); e("s_cselect_b32 s67, 0x200, s67")
e("s_movk_i32 s37, 3584"); e("s_cselect_b32 s37, 0x400, s37"); e("s_cselect_b32 s39, 0x100, 0")
e("s_lshl_b32 s70, s7, 8"); e("s_cmp_ge_u32 s7, 14"); e("s_cselect_b32 s70, 0, s70")
e("s_and_b32 s38, s38, 1"); e("s_cselect_b32 s65, -1, 1"); e("s_cselect_b32 s67, s67, 0")
e("v_lshrrev_b32 v8, 3, v0"); e("v_and_b32 v9, 3, v8"); e("v_and_b32 v10, 4, v8"); e("v_lshl_add_u32 v9, v10, 1, v9")
e("v_lshlrev_b32 v8, 1, v8"); e("v_cndmask_b32 v8, v8, v9, s[68:69]"); e("v_add_u32 v8, s64, v8")
e("v_lshrrev_b32 v10, 4, v0"); e("v_xor_b32 v11, v10, v0"); e("v_and_b32 v11, 7, v11"); e("v_lshlrev_b32 v11, 4, v11")
e("v_cmp_eq_u32 vcc, 0, v8"); e("v_mov_b32 v12, s67"); e("v_xor_b32 v13, 64, v11")
for q in range(4):
    if q == 0: e("v_cndmask_b32 v9, v8, v12, vcc")
    else:
        e(f"s_cmp_ge_u32 s7, 14"); e(f"s_cselect_b32 s36, {(4,16,20)[q-1]}, {16*q}"); e("v_add_u32 v9, s36, v8")
    e("v_mul_lo_u32 v9, v9, s65"); e("v_add_u32 v9, s66, v9"); e("v_and_b32 v9, 0x7ff, v9")
    e(f"v_lshl_add_u32 v{2+q}, v9, 10, v{13 if q & 1 else 11}")
e("v_lshlrev_b32 v9, 2, v10"); e("v_xor_b32 v9, v9, v0"); e("v_and_b32 v9, 15, v9")
e("s_lshl_b32 s36, s3, 4"); e("v_add_u32 v10, s36, v10"); e("v_mul_lo_u32 v10, v10, s37")
e("v_lshl_add_u32 v6, v9, 4, v10"); e("v_add_u32 v6, s70, v6"); e("v_add_u32 v7, s39, v6")
e("s_lshl_b32 s71, s37, 2"); e("s_mul_i32 s72, s37, 52"); e("s_lshl_b32 s73, s3, 12")
e("s_lshl_b32 s74, s7, 1"); e("s_add_u32 s74, s74, s6"); e(f"s_and_b32 s74, s74, {ROT & 7}")
e("s_mul_i32 s75, s74, s37"); e("s_lshl_b32 s75, s75, 6"); e("s_lshl_b32 s74, s74, 7")
e("s_lshl_b32 s37, s37, 9")
e("s_waitcnt lgkmcnt(0)")
srd(8, 40, 2048*1024)
e("s_cmp_eq_u32 s7, 14"); e("s_cselect_b32 s50, s44, s46"); e("s_cselect_b32 s51, s45, s47")
e("s_cmp_ge_u32 s7, 14"); e("s_cselect_b32 s48, s50, s52"); e("s_cselect_b32 s49, s51, s53"); e("s_cselect_b32 s50, s50, s54"); e("s_cselect_b32 s51, s51, s55")
srd(12, 48, "s37"); srd(16, 50, "s37")
if OPT.get('pf', '0') == '1':
    e("s_cmp_eq_u32 s3, 1"); e("s_cselect_b32 s24, s54, s52"); e("s_cselect_b32 s25, s55, s53")
    e("s_cmp_eq_u32 s3, 2"); e("s_cselect_b32 s24, s40, s24"); e("s_cselect_b32 s25, s41, s25"); e("s_movk_i32 s36, 7168"); e("s_cselect_b32 s36, 0x2000, s36")
    e("s_cmp_eq_u32 s3, 3"); e("s_cselect_b32 s24, s56, s24"); e("s_cselect_b32 s25, s57, s25")
    e("s_lshl_b32 s26, s36, 8"); e("s_mov_b32 s27, 0x00020000"); e("s_mul_i32 s36, s36, s2"); e("v_lshlrev_b32 v14, 7, v0")
    e("buffer_load_dword v15, v14, s[24:27], s36 offen")
XB, WB = 0, 49152
def dma_list(buf):
    r = []
    for q in range(4):
        r.append([f"s_add_u32 m0, s73, {XB + buf*16384 + q*1024}", "s_nop 0", f"buffer_load_dwordx4 v{2+q}, s[8:11], s74 offen lds"])
    for q in range(4):
        for u in range(2):
            r.append([f"s_add_u32 m0, s73, {WB + buf*32768 + u*16384 + q*1024}", "s_nop 0", f"buffer_load_dwordx4 v{6+u}, s[{12+4*u}:{15+4*u}], s75 offen lds"])
        r[-1].append(f"s_add_u32 s75, s75, s{71 if q < 3 else 72}")
    r[3] += ["s_add_u32 s74, s74, 128", "s_and_b32 s74, s74, 0x3ff"]
    r[-1] += ["s_cmp_ge_u32 s75, s37", "s_cselect_b32 s75, 0, s75"]
    return r
def dma(buf):
    for g in dma_list(buf):
        for i in g: e(i)
dma(0)
srd(20, 42, WS_SIZE); srd(24, 56, 1792*1024); srd(32, 58, 1024); srd(28, 62, 256)
e("s_lshl_b32 s36, s3, 6"); e("v_add_u32 v253, s36, v0"); e("v_lshlrev_b32 v252, 2, v253")
e("s_lshl_b32 s36, s2, 13"); e("s_add_u32 s38, s36, 4096")
for q in range(8): e(f"buffer_load_dword v{208+q}, v252, s[24:27], s{36 if q < 4 else 38} offen offset:{1024*(q&3)}")
e("s_cmp_lt_u32 s3, 2"); e("s_cbranch_scc0 SL_DONE")
e("s_lshl_b32 s36, s2, 1"); e("s_add_u32 s76, s36, s3"); e("s_cmp_eq_u32 s76, 0"); e("s_cselect_b32 s36, 0x200, s76"); e("s_sub_u32 s36, 0, s36")
e("v_lshrrev_b32 v250, 4, v0"); e("v_add_u32 v251, 1, v250"); e("v_and_b32 v251, 2, v251"); e("v_cmp_ne_u32 vcc, 0, v251")
e("v_mov_b32 v251, s76"); e("v_mov_b32 v249, s36"); e("v_cndmask_b32 v251, v251, v249, vcc")
e("v_lshrrev_b32 v250, 1, v250"); e("v_lshl_add_u32 v251, v250, 10, v251"); e("v_and_b32 v251, 0x7ff, v251")
e("v_and_b32 v250, 15, v0"); e("v_lshlrev_b32 v250, 4, v250"); e("v_lshl_add_u32 v249, v251, 10, v250")
for q in range(4): e(f"buffer_load_dwordx4 {vr(216+4*q,4)}, v249, s[8:11], 0 offen offset:{256*q}")
for q in range(4): e(f"buffer_load_dwordx4 {vr(232+4*q,4)}, v250, s[32:35], 0 offen offset:{256*q}")
lab("SL_DONE")
dma(1)
e("v_lshlrev_b32 v1, 4, v0")
e("s_lshl_b32 s77, s6, 4"); e("s_add_u32 s77, s77, s7"); e("s_lshl_b32 s36, s6, 1"); e("s_add_u32 s36, s36, s7"); e("s_add_u32 s36, s36, 242")
e("s_cmp_ge_u32 s7, 14"); e("s_cselect_b32 s77, s36, s77"); e("s_lshl_b32 s77, s77, 2"); e(f"s_add_u32 s77, s77, {FL_OFF}")
e("v_and_b32 v14, 31, v0"); e("v_lshrrev_b32 v15, 5, v0"); e("v_bfe_u32 v9, v0, 1, 3"); e("v_xor_b32 v9, v15, v9")
e("v_lshlrev_b32 v9, 4, v9"); e("v_lshl_add_u32 v8, v14, 7, v9")
for k in range(1, 4): e(f"v_xor_b32 v{8+k}, {32*k}, v8")
e("v_bfe_u32 v14, v0, 2, 2"); e("v_lshl_add_u32 v15, v15, 3, v14"); e("v_lshlrev_b32 v12, 8, v15")
e("v_xor_b32 v14, s3, v14"); e("v_lshl_add_u32 v12, v14, 6, v12"); e("v_bfe_u32 v14, v0, 4, 1"); e("v_lshl_add_u32 v12, v14, 5, v12")
e("v_and_b32 v14, 3, v0"); e("v_bfrev_b32 v15, v14"); e("v_lshrrev_b32 v15, 30, v15"); e("v_cndmask_b32 v14, v15, v14, s[68:69]")
e("v_lshl_add_u32 v12, v14, 3, v12"); e(f"v_add_u32 v12, {WB}, v12"); e("v_add_u32 v13, 0x10000, v12")
e("s_lshr_b32 s78, s4, 1"); e("s_lshl_b32 s78, s78, 3"); e("s_and_b32 s36, s5, 3"); e("s_lshl_b32 s36, s36, 1"); e("s_add_u32 s78, s78, s36")
e("s_and_b32 s36, s4, 1"); e("s_add_u32 s78, s78, s36"); e("s_lshr_b32 s79, s5, 2")
e("s_and_b32 s38, s78, 6"); e("s_add_u32 s38, s38, s79"); e(f"s_and_b32 s38, s38, {ROT >> 3}"); e("s_lshl_b32 s38, s38, 2")
e("s_mul_i32 s36, s3, 28"); e("s_add_u32 s36, s36, s38"); e("s_cmp_ge_u32 s36, 112"); e("s_cselect_b32 s36, 0, s36"); e("s_lshl_b32 s36, s36, 11")
e(f"s_mul_i32 s44, s78, {112*2048}"); e("s_add_u32 s80, s44, s36"); e(f"s_add_u32 s45, s44, {112*2048}")
e(f"s_mul_i32 s46, s79, {112*2048}"); e(f"s_add_u32 s46, s46, {WD_OFF}"); e("s_add_u32 s81, s46, s36"); e(f"s_add_u32 s47, s46, {112*2048}")
stamp(1)
e("s_waitcnt vmcnt(12)")
e("v_mov_b32 v248, 0"); e("s_mov_b64 exec, 1"); e("buffer_store_dword v248, v248, s[20:23], s77 offen sc1"); e("s_mov_b64 exec, -1")
e("s_cmp_ge_u32 s2, 224"); e("s_cbranch_scc1 SJ_GATE")
e("s_mov_b32 s36, 0x05040100"); e("s_mov_b32 s38, 0x07060302")
for i in range(4): e(f"v_perm_b32 v{16+i}, v{209+2*i}, v{208+2*i}, s36"); e(f"v_perm_b32 v{20+i}, v{209+2*i}, v{208+2*i}, s38")
e("s_lshr_b32 s36, s2, 1"); e("s_lshl_b32 s36, s36, 11"); e("s_and_b32 s38, s2, 1"); e("s_lshl_b32 s38, s38, 9")
e("s_add_u32 s36, s36, s38"); e(f"s_add_u32 s36, s36, {WD_OFF}"); e(f"s_mov_b32 s38, {112*2048}")
for c in range(2):
    e(f"v_lshl_add_u32 v24, v253, 1, {c}")
    e("v_sub_u32 v25, 0x200, v24"); e("v_cmp_gt_u32 vcc, 0x100, v24"); e("v_and_b32 v25, 0xff, v25"); e("s_nop 0")
    e("v_cndmask_b32 v25, v25, v24, vcc")
    e("v_lshrrev_b32 v26, 5, v25"); e("v_mul_lo_u32 v26, v26, s38"); e("v_lshrrev_b32 v24, 8, v24"); e("v_lshl_add_u32 v26, v24, 10, v26")
    e("v_and_b32 v25, 31, v25"); e(f"v_lshl_add_u32 v{27+c}, v25, 4, v26")
    e(f"buffer_store_dwordx4 {vr(16+4*c,4)}, v{27+c}, s[20:23], s36 offen sc1")
lab("SJ_GATE")
e("s_cmp_lt_u32 s3, 2"); e("s_cbranch_scc0 SJ_DONE")
e("v_mov_b32 v208, 0"); e("v_mov_b32 v209, 0")
for i in range(16):
    e(f"v_lshlrev_b32 v210, 16, v{216+i}"); e(f"v_lshlrev_b32 v211, 16, v{232+i}")
    e(f"v_and_b32 v{216+i}, 0xffff0000, v{216+i}"); e(f"v_and_b32 v{232+i}, 0xffff0000, v{232+i}")
    e("v_fmac_f32 v208, v210, v211"); e("v_add_f32 v209, v209, v210")
    e(f"v_fmac_f32 v208, v{216+i}, v{232+i}"); e(f"v_sub_f32 v209, v209, v{216+i}")
for sh in (8, 4, 2, 1):
    e("s_nop 1")
    e(f"v_add_f32_dpp v208, v208, v208 row_ror:{sh} row_mask:0xf bank_mask:0xf")
    e(f"v_add_f32_dpp v209, v209, v209 row_ror:{sh} row_mask:0xf bank_mask:0xf")
e("v_mul_f32 v208, 0xbfb8aa3b, v208"); e("v_exp_f32 v208, v208"); e("v_sub_u32 v210, 0x800, v251"); e("v_add_f32 v208, 1.0, v208")
e("v_rcp_f32 v208, v208"); e("v_cmp_gt_u32 vcc, 0x400, v251"); e("v_and_b32 v210, 0x3ff, v210"); e("s_nop 0")
e("v_cndmask_b32 v210, v210, v251, vcc")
e("v_lshrrev_b32 v211, 6, v210"); e("v_lshlrev_b32 v211, 7, v211"); e("v_and_b32 v212, 1, v210"); e("v_lshl_add_u32 v211, v212, 6, v211")
e("v_bfe_u32 v212, v210, 1, 5"); e("v_add_u32 v211, v211, v212"); e("v_lshrrev_b32 v212, 10, v251"); e("v_lshl_add_u32 v211, v212, 5, v211")
e("v_lshlrev_b32 v211, 2, v211"); e(f"s_mov_b32 s36, {GT_OFF}")
e("s_mov_b32 exec_lo, 0x10001"); e("s_mov_b32 exec_hi, 0x10001")
e("buffer_store_dword v208, v211, s[20:23], s36 offen sc1"); e("s_mov_b64 exec, -1")
for g in range(4): e(f"v_readlane_b32 s{64+g}, v209, {16*g}")
e("s_nop 3")
e("v_mov_b32 v210, s66"); e("v_add_f32 v210, s65, v210")
e("s_cmp_eq_u32 s76, 0"); e("s_cselect_b32 s65, 0, s65"); e("s_cselect_b32 s66, 0, s66")
e("v_mov_b32 v211, s64"); e("v_add_f32 v211, s65, v211"); e("v_mov_b32 v212, s67"); e("v_add_f32 v212, s66, v212")
e("v_add_f32 v213, v211, v212"); e("v_sub_f32 v214, v211, v212"); e("v_cvt_pk_bf16_f32 v213, v213, v214")
e("s_lshr_b32 s36, s76, 4"); e("s_lshl_b32 s36, s36, 11"); e("s_and_b32 s38, s76, 8"); e("s_lshl_b32 s38, s38, 6")
e("s_add_u32 s36, s36, s38"); e("s_and_b32 s38, s76, 7"); e("s_lshl_b32 s38, s38, 1"); e("s_add_u32 s36, s36, s38")
e(f"s_add_u32 s36, s36, {EO_OFF + 1024}"); e(f"s_add_u32 s38, s36, {8*33*2048}")
e("s_mov_b64 exec, 1")
e("buffer_store_short v213, v248, s[20:23], s36 offen sc1"); e("buffer_store_short_d16_hi v213, v248, s[20:23], s38 offen sc1")
e("s_mov_b64 exec, -1")
e("s_cmp_eq_u32 s76, 0"); e("s_cbranch_scc0 SJ_DONE")
e("v_cvt_pk_bf16_f32 v216, v210, 0"); e("v_cmp_eq_u32 vcc, 0, v0"); e("v_mov_b32 v217, 0"); e("v_mov_b32 v218, 0"); e("v_mov_b32 v219, 0")
e("v_cndmask_b32 v216, 0, v216, vcc")
e(f"s_mov_b32 s36, {EO_OFF + 32*2048 + 1024}"); e(f"s_mov_b32 s38, {EO_OFF + (8*33+32)*2048 + 1024}")
e("s_mov_b32 exec_lo, 1"); e("s_mov_b32 exec_hi, 1")
e("buffer_store_dwordx4 v[216:219], v1, s[20:23], s36 offen sc1"); e("buffer_store_dwordx4 v[216:219], v1, s[20:23], s38 offen sc1")
e("s_mov_b64 exec, -1")
lab("SJ_DONE")
e("v_and_b32 v14, 3, v0"); e("v_lshlrev_b32 v14, 6, v14")
e("v_and_b32 v16, 31, v0"); e("v_lshlrev_b32 v16, 2, v16"); e("v_lshrrev_b32 v17, 5, v0"); e("v_lshlrev_b32 v17, 4, v17")
e("s_lshl_b32 s82, s6, 9"); e(f"s_add_u32 s82, s82, {GT_OFF}"); e("s_lshl_b32 s83, s78, 8"); e(f"s_add_u32 s83, s83, {GT_OFF}")
e("s_cmp_ge_u32 s7, 14"); e("s_cbranch_scc1 P1_DFT")
ACC, FA, FB, GV = 32, 160, 184, 224
def mainloop(dft):
    T = "D" if dft else "F"
    def reads(st, ks, F):
        buf = st % 3; r = []
        for u in range(2):
            for rh in range(2):
                off = buf*32768 + u*16384 + ks*4096 + rh*1024; a = 12
                if off >= 65536: off -= 65536; a = 13
                r.append(f"ds_read_b64_tr_b16 {vr(F+16+4*u+2*rh,2)}, v{a} offset:{off}")
        for f in range(4): r.append(f"ds_read_b128 {vr(F+4*f,4)}, v{8+ks} offset:{XB + buf*16384 + f*4096}")
        return r
    def kstep(F, first, rd, extra):
        for i in range(8):
            c = vr(ACC+16*i, 16); x, w = vr(F+4*(i>>1), 4), vr(F+16+4*(i&1), 4)
            e(f"v_mfma_f32_32x32x16_bf16 {c}, {x if dft else w}, {w if dft else x}, {'0' if first else c}")
            if rd: e(rd[i])
            if extra and (i & 1 or (len(extra) > 12 and NWD > 40)):
                for s in extra.pop(0): e(s)
    wd = []
    for s in range(28):
        for f in range(2): wd.append([f"buffer_load_dwordx4 {ar(8*s+4*f,4)}, v1, s[20:23], s81 offen offset:{2048*(s&1)+1024*f} sc1"])
        if s & 1: wd[-1] += ["s_add_u32 s81, s81, 4096", "s_cmp_ge_u32 s81, s47", "s_cselect_b32 s81, s46, s81"]
    gl = [[f"buffer_load_dword v{20+f}, v16, s[20:23], s82 offen offset:{128*f} sc1"] for f in range(4)]
    gl += [[f"buffer_load_dwordx4 {vr(GV+4*q,4)}, v17, s[20:23], s83 offen offset:{32*q} sc1"] for q in range(8)]
    wd = gl + wd
    global WDREST
    WDREST = wd[NWD:]
    e("s_barrier"); stamp(2)
    for r in reads(0, 0, FA): e(r)
    extra = dma_list(2)
    for st in range(8):
        e("s_waitcnt lgkmcnt(0)"); kstep(FA, st == 0, reads(st, 1, FB), extra)
        e("s_waitcnt lgkmcnt(0)"); kstep(FB, False, reads(st, 2, FA), extra)
        e("s_waitcnt lgkmcnt(0)"); kstep(FA, False, reads(st, 3, FB), extra)
        if st < 7:
            assert st == 6 or not extra
            e(f"s_waitcnt vmcnt({12 if st < 6 else NWD - len(extra)}) lgkmcnt(0)"); e("s_barrier")
            if st in (0, 2, 4, 5, 6): stamp({0:1, 2:4, 4:5, 5:6, 6:7}[st], 1)
            if st == 0:
                e("s_cmp_eq_u32 s3, 0"); e(f"s_cbranch_scc0 NOARR{T}"); e("s_and_b32 s36, s2, 3"); e("s_lshl_b32 s36, s36, 6")
                e("v_mov_b32 v15, 1"); e("s_mov_b64 exec, 1"); e("buffer_atomic_add v15, v248, s[28:31], s36 offen sc1"); e("s_mov_b64 exec, -1")
                lab(f"NOARR{T}")
            if st == 4: e("buffer_load_dword v15, v14, s[28:31], 0 offen sc1")
            if st == 5:
                e("s_mov_b32 s36, 0"); lab(f"C0CHK{T}"); e("v_cmp_gt_u32 vcc, 64, v15"); e(f"s_cbranch_vccz C0OK{T}")
                e("s_sleep 2"); e("buffer_load_dword v15, v14, s[28:31], 0 offen sc1"); e("s_add_u32 s36, s36, 1"); e("s_waitcnt vmcnt(0)")
                e("s_cmp_lt_u32 s36, 0x40000"); e(f"s_cbranch_scc1 C0CHK{T}"); lab(f"C0OK{T}"); extra = wd[:NWD]
            if st + 3 <= 7: extra = dma_list(st % 3)
            kstep(FB, False, reads(st+1, 0, FA), extra)
        else:
            e("s_waitcnt lgkmcnt(0)"); kstep(FB, False, None, extra)
    for g in extra:
        for s in g: e(s)
    stamp(3)
mainloop(False)
e("s_mul_i32 s36, s6, 224"); e("s_lshl_b32 s38, s7, 3"); e("s_add_u32 s36, s36, s38"); e("s_lshl_b32 s38, s3, 1"); e("s_add_u32 s36, s36, s38")
e("s_lshl_b32 s36, s36, 11"); e(f"s_add_u32 s38, s36, {112*2048}")
e(f"s_waitcnt vmcnt({NWD-12})")
for f in range(4): e(f"v_sub_f32 v{20+f}, 1.0, v{20+f}")
for f in range(4): e(f"v_rcp_f32 v{20+f}, v{20+f}")
e("s_mov_b32 s64, 0xbfb8aa3b"); e("s_mov_b32 s65, 0xbfb8aa3b")
for f in range(4): e(f"v_min_f32 v{24+2*f}, 0x71800000, v{20+f}"); e(f"v_min_f32 v{25+2*f}, 0x71800000, v{20+f}")
for f in range(4):
    g = ACC + 32*f; u = g + 16
    for h in range(2):
        P = [2*i for i in range(4)]
        for i in P: e(f"v_pk_mul_f32 {vr(FA+i,2)}, {vr(g+8*h+i,2)}, s[64:65]")
        for i in range(8): e(f"v_exp_f32 v{FA+i}, v{FA+i}")
        for i in P: e(f"v_pk_mul_f32 {vr(g+8*h+i,2)}, {vr(g+8*h+i,2)}, {vr(u+8*h+i,2)}")
        for i in P: e(f"v_pk_fma_f32 {vr(FA+i,2)}, {vr(FA+i,2)}, {vr(24+2*f,2)}, {vr(24+2*f,2)}")
        for i in range(8): e(f"v_rcp_f32 v{FA+i}, v{FA+i}")
        for i in P: e(f"v_pk_mul_f32 {vr(g+8*h+i,2)}, {vr(g+8*h+i,2)}, {vr(FA+i,2)}")
        d = u + 8*h
        for i in range(4): e(f"v_cvt_pk_bf16_f32 v{d+i}, v{g+8*h+2*i}, v{g+8*h+2*i+1}")
        e(f"buffer_store_dwordx4 {vr(d,4)}, v1, s[20:23], s{38 if f >> 1 else 36} offen offset:{2048*h + 1024*(f&1)} sc1")
lab("P1_DONE")
def csreg(k): return 168 + 8*k if k < 7 else 16 + 8*(k-7)
e("s_lshr_b32 s36, s78, 1"); e("s_lshl_b32 s36, s36, 6"); e("s_and_b32 s38, s78, 1"); e("s_add_u32 s70, s36, s38")
e("v_and_b32 v2, 31, v0"); e("v_lshl_add_u32 v2, v2, 1, s70"); e("v_cmp_eq_u32 s[64:65], 0, v2")
e("v_lshrrev_b32 v3, 5, v0"); e("s_lshl_b32 s36, s3, 7"); e("v_lshl_add_u32 v3, v3, 3, s36"); e("v_mul_lo_u32 v3, v3, v2")
e("v_cvt_f32_u32 v3, v3"); e("v_cvt_f32_u32 v2, v2"); e("v_mul_f32 v3, 0x3a000000, v3"); e("v_mul_f32 v2, 0x3a000000, v2")
e("v_mul_f32 v4, 0x41100000, v2"); e("v_mov_b32 v5, 0xbf803f80")
def csgen(k):
    r = csreg(k)
    e("v_fract_f32 v3, v3")
    for i in range(4):
        e("v_add_f32 v6, v3, v2"); e("v_cos_f32 v7, v3"); e("v_sin_f32 v8, -v3"); e("v_cos_f32 v9, v6"); e("v_sin_f32 v10, -v6")
        e(f"v_add_f32 v3, v6, v{2 if i < 3 else 4}")
        e(f"v_cvt_pk_bf16_f32 v{r+i}, v7, v9"); e(f"v_cvt_pk_bf16_f32 v{r+4+i}, v8, v10")
        e(f"v_cndmask_b32 v{r+4+i}, v{r+4+i}, v5, s[64:65]")
for g in WDREST[:NW2]:
    for x in g: e(x)
for k in range(NCS): csgen(k)
e(f"s_waitcnt vmcnt({len(WDREST[:NW2])})"); e("s_barrier")
e("v_mov_b32 v11, 1"); e("v_mov_b32 v12, 0"); e("s_cmp_eq_u32 s3, 0"); e("s_cselect_b64 exec, 1, 0"); e("s_cbranch_execz NOFLAG")
e("buffer_store_dword v11, v12, s[20:23], s77 offen sc1")
lab("NOFLAG"); e("s_mov_b64 exec, -1"); stamp(4)
rest = WDREST[NW2:]
for k in range(NCS, 9):
    for g in rest[:6]:
        for x in g: e(x)
    rest = rest[6:]
    csgen(k)
assert not rest
e("v_lshlrev_b32 v11, 2, v0"); e("v_add_u32 v11, 0x400, v11"); e("v_subrev_u32 v12, 32, v0"); e("v_min_u32 v12, 13, v12")
e("s_lshr_b32 s36, s78, 1"); e("s_lshl_b32 s36, s36, 6"); e("v_lshl_add_u32 v12, v12, 2, s36"); e("v_cmp_gt_u32 vcc, 32, v0")
e(f"s_mov_b32 s38, {FL_OFF}"); e("s_mov_b32 s36, 0"); e("v_cndmask_b32 v11, v12, v11, vcc")
e("s_and_b32 s82, s78, 1"); e("s_lshl_b32 s82, s82, 3"); e("s_add_u32 s82, s82, s79"); e("s_mul_i32 s82, s82, 33")
e("s_lshl_b32 s39, s3, 3"); e("s_add_u32 s82, s82, s39"); e("s_lshl_b32 s82, s82, 11"); e(f"s_add_u32 s82, s82, {EO_OFF}")
e("s_cmp_eq_u32 s3, 3"); e("s_cselect_b32 s39, 0, 0x40000000")
e("s_cmp_eq_u32 s3, 0"); e("s_cbranch_scc0 POLLOK")
lab("POLL"); e("buffer_load_dword v12, v11, s[20:23], s38 offen sc1"); e("s_add_u32 s36, s36, 1"); e("s_waitcnt vmcnt(0)")
e("v_cmp_ne_u32 vcc, 1, v12"); e("s_cbranch_vccz POLLOK"); e(f"s_sleep {OPT.get('slp', 4)}"); e("s_cmp_lt_u32 s36, 0x40000"); e("s_cbranch_scc1 POLL")
lab("POLLOK"); e("s_barrier"); stamp(5)
Q = []
hreg = {}
def ld(tag, dst, sreg, off):
    e(f"buffer_load_dwordx4 {dst}, v1, s[20:23], s{sreg} offen offset:{off} sc1"); Q.append(tag)
nh = [0]
def ldh(kind, base):
    s = nh[0]; nh[0] += 1; hreg[s] = (kind, base)
    for f in range(2): ld(('h', s), (ar if kind == 'a' else vr)(base+4*f, 4), 80, 2048*(s&1)+1024*f)
    if s & 1: e("s_add_u32 s80, s80, 4096"); e("s_cmp_ge_u32 s80, s45"); e("s_cselect_b32 s80, s44, s80")
def wait(tag):
    last = max(i for i, t in enumerate(Q) if t == tag); e(f"s_waitcnt vmcnt({len(Q)-1-last})")
for k in range(9):
    if k == 8: e("s_add_u32 s82, s82, s39")
    for f in range(2): ld(('e', k), vr(96+8*k+4*f, 4), 82, 2048*(k&1)+1024*f)
    if k & 1: e("s_add_u32 s82, s82, 4096")
for k in range(4): ldh('a', 224+8*k)
A2 = 32
for k in range(9):
    wait(('e', k))
    for i in range(4):
        c = vr(A2+16*i, 16); e(f"v_mfma_f32_32x32x16_bf16 {c}, {vr(csreg(k)+4*(i>>1),4)}, {vr(96+8*k+4*(i&1),4)}, {'0' if k == 0 else c}")
    ldh('v', csreg(k)); ldh('v', 96+8*k)
e("s_cmp_eq_u32 s79, 0"); e("s_cselect_b32 s24, 1, 0"); e("s_mov_b32 s25, s24")
e("s_cmp_eq_u32 s78, 0"); e("s_cselect_b32 s26, -1, 0"); e("s_mov_b32 s27, 0"); e("s_nop 7")
PP, PQ, QP, QQ = A2, A2+16, A2+32, A2+48
for i in range(16):
    e(f"v_sub_f32 v4, v{PP+i}, v{QQ+i}"); e(f"v_add_f32 v5, v{PP+i}, v{QQ+i}")
    e(f"v_cndmask_b32 v6, v4, v{PP+i}, s[24:25]"); e(f"v_cndmask_b32 v7, v5, v{PQ+i}, s[24:25]")
    e(f"v_cndmask_b32 v8, v5, v{PP+i}, s[24:25]"); e(f"v_cndmask_b32 v9, v4, v{PQ+i}, s[24:25]")
    if i == 0:
        e(f"v_cndmask_b32 v4, v{PP}, v{PQ}, s[24:25]"); e(f"v_cndmask_b32 v5, v{QP}, v{QQ}, s[24:25]")
        e(f"v_cndmask_b32 v6, v6, v{PP}, s[26:27]"); e(f"v_cndmask_b32 v7, v7, v4, s[26:27]")
        e(f"v_cndmask_b32 v8, v8, v{QP}, s[26:27]"); e(f"v_cndmask_b32 v9, v9, v5, s[26:27]")
    for q in range(4): e(f"v_mul_f32 v{A2+16*q+i}, v{GV+16*(q>>1)+i}, v{6+q}")
for k in range(4): ldh('v', GV+8*k)
for s in range(28):
    wait(('h', s)); kind, base = hreg[s]
    for i in range(4):
        c = vr(A2+16*i, 16); e(f"v_mfma_f32_32x32x16_bf16 {c}, {(ar if kind == 'a' else vr)(base+4*(i>>1),4)}, {ar(8*s+4*(i&1),4)}, {c}")
    if nh[0] < 28: ldh(kind, base)
stamp(6)
srd(8, 60, 2048*1024)
e("s_lshl_b32 s12, s3, 12"); e("v_add_u32 v2, s12, v1")
e("v_and_b32 v3, 31, v0"); e("s_lshl_b32 s12, s79, 5"); e("v_add_u32 v3, s12, v3")
e("v_sub_u32 v4, 0x200, v3"); e("v_mov_b32 v5, 0x100"); e("v_cndmask_b32 v4, v4, v5, s[24:25]")
e("s_and_b32 s12, s3, 1"); e("s_cselect_b64 s[28:29], -1, 0"); e("v_cndmask_b32 v3, v3, v4, s[28:29]")
e("v_lshrrev_b32 v4, 5, v0"); e("v_lshl_add_u32 v4, v4, 3, s70")
for qd in range(4):
    for q in range(4): e(f"ds_write_b128 v2, {vr(A2+16*qd+4*q,4)} offset:{qd*16384+q*1024}")
e("s_lshl_b32 s12, s3, 14"); e("v_add_u32 v2, s12, v1")
e("v_sub_u32 v5, 0x800, v4"); e("s_movk_i32 s12, 0x800"); e("s_cmp_ge_u32 s3, 2"); e("s_cselect_b64 s[28:29], -1, 0")
e("s_cselect_b32 s12, 0xfffff800, s12"); e("s_mul_i32 s13, s12, 5"); e("s_and_b64 s[26:27], s[26:27], s[28:29]")
e("v_cndmask_b32 v4, v4, v5, s[28:29]"); e("v_lshlrev_b32 v3, 1, v3"); e("v_lshl_add_u32 v4, v4, 10, v3")
e("v_add_u32 v5, 0x100000, v3"); e("v_cndmask_b32 v5, v4, v5, s[26:27]")
for i in range(1, 16): e(f"v_add_u32 v{6+i}, s{13 if (i & 3) == 0 else 12}, v{4 if i == 1 else 5+i}")
e("s_waitcnt lgkmcnt(0)"); e("s_barrier")
for q in range(4):
    for w in range(4): e(f"ds_read_b128 {vr(A2+16*w+4*q,4)}, v2 offset:{w*4096+q*1024}")
for q in range(4):
    e(f"s_waitcnt lgkmcnt({12-4*q})")
    for i in range(4*q, 4*q+4): e(f"v_add_f32 v{A2+i}, v{A2+i}, v{A2+16+i}"); e(f"v_add_f32 v{A2+32+i}, v{A2+32+i}, v{A2+48+i}")
    for i in range(4*q, 4*q+4): e(f"v_add_f32 v{A2+i}, v{A2+i}, v{A2+32+i}")
    for i in range(2*q, 2*q+2): e(f"v_cvt_pk_bf16_f32 v{96+i}, v{A2+2*i}, v{A2+2*i+1}")
    for i in range(4*q, 4*q+4): e(f"buffer_store_short{'_d16_hi' if i & 1 else ''} v{96+i//2}, v{5 if i == 0 else 6+i}, s[8:11], 0 offen")
if TS:
    e("s_waitcnt vmcnt(0)"); stamp(7); e("s_waitcnt lgkmcnt(0)"); e("s_mov_b64 exec, 1")
    for i in range(8): e(f"v_mov_b32 v{8+i}, s{84+2*i}")
    e("v_mov_b32 v16, 0"); e("s_lshl_b32 s36, s2, 3"); e("s_add_u32 s36, s36, s3"); e("s_lshl_b32 s36, s36, 5"); e(f"s_add_u32 s36, s36, {TS_OFF}")
    e("buffer_store_dwordx4 v[8:11], v16, s[20:23], s36 offen"); e("buffer_store_dwordx4 v[12:15], v16, s[20:23], s36 offen offset:16")
lab("K_END")
e("s_endpgm")
lab("P1_DFT")
mainloop(True)
e("s_cmp_eq_u32 s7, 14"); e("s_cselect_b32 s64, 1.0, -1.0")
e("s_mul_i32 s36, s3, 33"); e("s_lshl_b32 s36, s36, 11"); e("s_sub_u32 s38, s7, 14"); e("s_lshl_b32 s38, s38, 10")
e("s_add_u32 s36, s36, s38"); e(f"s_add_u32 s36, s36, {EO_OFF}")
e("s_lshl_b32 s38, s7, 2"); e("s_add_u32 s38, s38, s3"); e("s_cmp_eq_u32 s38, 60"); e("s_cselect_b32 s66, -2, -1"); e("s_mov_b32 s67, s66")
e("v_mov_b32 v25, 0"); e("v_mov_b32 v26, 0"); e("v_mov_b32 v27, 0"); e("v_cmp_gt_u32 vcc, 32, v0"); e("s_nop 7")
for u in range(2):
    R = [ACC + 32*f + 16*u for f in range(4)]
    e("s_cmp_eq_u32 s6, 0"); e(f"s_cbranch_scc0 DGEN{u}")
    e(f"v_fma_f32 v24, v{R[1]}, s64, v{R[2]}"); e("v_cvt_pk_bf16_f32 v24, v24, 0")
    e("v_cndmask_b32 v24, 0, v24, vcc"); e(f"v_cndmask_b32 v{R[1]}, v{R[1]}, v25, vcc"); e(f"v_cndmask_b32 v{R[2]}, v{R[2]}, v25, vcc")
    e(f"s_add_u32 s38, s36, {32*2048}"); e(f"s_add_u32 s39, s36, {(8*33+32)*2048}")
    if u == 0: e("s_mov_b64 exec, s[66:67]")
    e("buffer_store_dwordx4 v[24:27], v1, s[20:23], s38 offen sc1"); e("buffer_store_dwordx4 v[24:27], v1, s[20:23], s39 offen sc1")
    e("s_mov_b64 exec, -1")
    lab(f"DGEN{u}")
    e("s_lshl_b32 s38, s6, 12"); e("s_add_u32 s38, s36, s38"); e(f"s_add_u32 s39, s38, {8*33*2048}")
    for i in range(16): e(f"v_fma_f32 v{R[0]+i}, v{R[1]+i}, s64, v{R[0]+i}"); e(f"v_fma_f32 v{R[3]+i}, v{R[2]+i}, s64, v{R[3]+i}")
    for i in range(16): e(f"v_add_f32 v{R[1]+i}, v{R[0]+i}, v{R[3]+i}"); e(f"v_sub_f32 v{R[2]+i}, v{R[0]+i}, v{R[3]+i}")
    for p in range(2):
        for i in range(8): e(f"v_cvt_pk_bf16_f32 v{R[0]+8*p+i}, v{R[1+p]+2*i}, v{R[1+p]+2*i+1}")
    if u == 0: e("s_mov_b64 exec, s[66:67]")
    for p in range(2):
        for h in range(2): e(f"buffer_store_dwordx4 {vr(R[0]+8*p+4*h,4)}, v1, s[20:23], s{38+p} offen offset:{2048*h} sc1")
    e("s_mov_b64 exec, -1"); e(f"s_add_u32 s36, s36, {4*33*2048}")
e("s_branch P1_DONE")
L += ['.section .rodata,"a"', ".p2align 6", f".amdhsa_kernel {KN}", "  .amdhsa_next_free_vgpr 512", "  .amdhsa_next_free_sgpr 102",
      "  .amdhsa_accum_offset 256", "  .amdhsa_group_segment_fixed_size 0", "  .amdhsa_kernarg_size 104",
      "  .amdhsa_user_sgpr_count 2", "  .amdhsa_user_sgpr_kernarg_segment_ptr 1", "  .amdhsa_system_sgpr_workgroup_id_x 1", ".end_amdhsa_kernel"]
open(sys.argv[1], 'w').write("\n".join(L) + "\n")
```

```python
import sys
OPT = dict(a.split('=') for a in sys.argv[2:])
NAME = "gated_mix__spectral_fnet__swiglu_ffn__prompt"
KN = NAME + "_kernel"
L = []
NCS = int(OPT.get('ncs', 2))
NW2 = int(OPT.get('nw2', 0))
NWD = int(OPT.get('nwd', 36))
ROT = int(OPT.get('rot', 0))
def e(s): L.append("    " + s)
def lab(s): L.append(s + ":")
H_OFF = 0
WD_OFF = H_OFF + 32*112*2048
EO_OFF = WD_OFF + 8*112*2048
GT_OFF = EO_OFF + 16*33*2048
FL_OFF = GT_OFF + 8192
TS = int(OPT.get('ts', 0)); TS_OFF = 12427264
WS_SIZE = TS_OFF + 65536 if TS else FL_OFF + 2048
def srd(d, p, n):
    e(f"s_mov_b32 s{d}, s{p}"); e(f"s_mov_b32 s{d+1}, s{p+1}"); e(f"s_mov_b32 s{d+2}, {n}"); e(f"s_mov_b32 s{d+3}, 0x00020000")
def vr(a, n): return f"v[{a}:{a+n-1}]"
def ar(a, n): return f"a[{a}:{a+n-1}]"
def stamp(i, p=0):
    if OPT.get('pst') and i in (1, 4, 5, 6, 7) and not p: return
    if TS and (OPT.get('pst') or not p): e(f"s_memrealtime s[{84+2*i}:{85+2*i}]")
for l in open('cdna_kernels/' + NAME + '.s.ref').read().split('\n'):
    if l.startswith('; @launch'): break
    L.append(l)
L.append(f"; @launch {'kernel=' + KN + ' ' if TS else ''}grid=(256,1,1) block=(256,1,1) lds=147456")
L += ['.amdgcn_target "amdgcn-amd-amdhsa--gfx950"', ".text", f".globl {KN}", ".p2align 8", f".type {KN},@function"]
lab(KN)
e("s_cmp_ge_u32 s2, 256"); e("s_cbranch_scc1 K_END"); stamp(0)
e("s_load_dwordx2 s[40:41], s[0:1], 0")
e("s_load_dwordx4 s[44:47], s[0:1], 24")
e("s_load_dwordx8 s[52:59], s[0:1], 48")
e("s_load_dwordx4 s[60:63], s[0:1], 80")
e("s_load_dwordx2 s[42:43], s[0:1], 96")
e("v_lshrrev_b32 v1, 6, v0"); e("v_and_b32 v0, 63, v0"); e("v_readfirstlane_b32 s3, v1")
e("s_and_b32 s4, s2, 7"); e("s_lshr_b32 s5, s2, 3")
MAP = int(OPT.get('map', 0))
e("s_and_b32 s6, s4, 1"); e("s_lshl_b32 s6, s6, 3"); e("s_lshr_b32 s7, s5, 2" if MAP else "s_and_b32 s7, s5, 7"); e("s_add_u32 s6, s6, s7")
e("s_lshr_b32 s7, s4, 1"); e("s_lshl_b32 s7, s7, 2"); e("s_and_b32 s36, s5, 3" if MAP else "s_lshr_b32 s36, s5, 3"); e("s_add_u32 s7, s7, s36")
e("s_lshl_b32 s64, s6, 6"); e("s_lshr_b32 s36, s3, 1"); e("s_add_u32 s64, s64, s36"); e("s_lshl_b32 s37, s6, 5")
e("s_lshl_b32 s66, s36, 10"); e("s_add_u32 s38, s3, 1"); e("s_lshr_b32 s38, s38, 1")
e("s_cmp_ge_u32 s7, 14"); e("s_cselect_b64 s[68:69], -1, 0"); e("s_cselect_b32 s64, s37, s64"); e("s_cselect_b32 s66, s66, 0")
e("s_cselect_b32 s38, s38, s3"); e("s_movk_i32 s67, 0x400"); e("s_cselect_b32 s67, 0x200, s67")
e("s_movk_i32 s37, 3584"); e("s_cselect_b32 s37, 0x400, s37"); e("s_cselect_b32 s39, 0x100, 0")
e("s_lshl_b32 s70, s7, 8"); e("s_cmp_ge_u32 s7, 14"); e("s_cselect_b32 s70, 0, s70")
e("s_and_b32 s38, s38, 1"); e("s_cselect_b32 s65, -1, 1"); e("s_cselect_b32 s67, s67, 0")
e("v_lshrrev_b32 v8, 3, v0"); e("v_and_b32 v9, 3, v8"); e("v_and_b32 v10, 4, v8"); e("v_lshl_add_u32 v9, v10, 1, v9")
e("v_lshlrev_b32 v8, 1, v8"); e("v_cndmask_b32 v8, v8, v9, s[68:69]"); e("v_add_u32 v8, s64, v8")
e("v_lshrrev_b32 v10, 4, v0"); e("v_xor_b32 v11, v10, v0"); e("v_and_b32 v11, 7, v11"); e("v_lshlrev_b32 v11, 4, v11")
e("v_cmp_eq_u32 vcc, 0, v8"); e("v_mov_b32 v12, s67"); e("v_xor_b32 v13, 64, v11")
for q in range(4):
    if q == 0: e("v_cndmask_b32 v9, v8, v12, vcc")
    else:
        e(f"s_cmp_ge_u32 s7, 14"); e(f"s_cselect_b32 s36, {(4,16,20)[q-1]}, {16*q}"); e("v_add_u32 v9, s36, v8")
    e("v_mul_lo_u32 v9, v9, s65"); e("v_add_u32 v9, s66, v9"); e("v_and_b32 v9, 0x7ff, v9")
    e(f"v_lshl_add_u32 v{2+q}, v9, 10, v{13 if q & 1 else 11}")
e("v_lshlrev_b32 v9, 2, v10"); e("v_xor_b32 v9, v9, v0"); e("v_and_b32 v9, 15, v9")
e("s_lshl_b32 s36, s3, 4"); e("v_add_u32 v10, s36, v10"); e("v_mul_lo_u32 v10, v10, s37")
e("v_lshl_add_u32 v6, v9, 4, v10"); e("v_add_u32 v6, s70, v6"); e("v_add_u32 v7, s39, v6")
e("s_lshl_b32 s71, s37, 2"); e("s_mul_i32 s72, s37, 52"); e("s_lshl_b32 s73, s3, 12")
e("s_lshl_b32 s74, s7, 1"); e("s_add_u32 s74, s74, s6"); e(f"s_and_b32 s74, s74, {ROT & 7}")
e("s_mul_i32 s75, s74, s37"); e("s_lshl_b32 s75, s75, 6"); e("s_lshl_b32 s74, s74, 7")
e("s_lshl_b32 s37, s37, 9")
e("s_waitcnt lgkmcnt(0)")
srd(8, 40, 2048*1024)
e("s_cmp_eq_u32 s7, 14"); e("s_cselect_b32 s50, s44, s46"); e("s_cselect_b32 s51, s45, s47")
e("s_cmp_ge_u32 s7, 14"); e("s_cselect_b32 s48, s50, s52"); e("s_cselect_b32 s49, s51, s53"); e("s_cselect_b32 s50, s50, s54"); e("s_cselect_b32 s51, s51, s55")
srd(12, 48, "s37"); srd(16, 50, "s37")
if OPT.get('pf', '0') == '1':
    e("s_cmp_eq_u32 s3, 1"); e("s_cselect_b32 s24, s54, s52"); e("s_cselect_b32 s25, s55, s53")
    e("s_cmp_eq_u32 s3, 2"); e("s_cselect_b32 s24, s40, s24"); e("s_cselect_b32 s25, s41, s25"); e("s_movk_i32 s36, 7168"); e("s_cselect_b32 s36, 0x2000, s36")
    e("s_cmp_eq_u32 s3, 3"); e("s_cselect_b32 s24, s56, s24"); e("s_cselect_b32 s25, s57, s25")
    e("s_lshl_b32 s26, s36, 8"); e("s_mov_b32 s27, 0x00020000"); e("s_mul_i32 s36, s36, s2"); e("v_lshlrev_b32 v14, 7, v0")
    e("buffer_load_dword v15, v14, s[24:27], s36 offen")
XB, WB = 0, 49152
def dma_list(buf):
    r = []
    for q in range(4):
        r.append([f"s_add_u32 m0, s73, {XB + buf*16384 + q*1024}", "s_nop 0", f"buffer_load_dwordx4 v{2+q}, s[8:11], s74 offen lds"])
    for q in range(4):
        for u in range(2):
            r.append([f"s_add_u32 m0, s73, {WB + buf*32768 + u*16384 + q*1024}", "s_nop 0", f"buffer_load_dwordx4 v{6+u}, s[{12+4*u}:{15+4*u}], s75 offen lds"])
        r[-1].append(f"s_add_u32 s75, s75, s{71 if q < 3 else 72}")
    r[3] += ["s_add_u32 s74, s74, 128", "s_and_b32 s74, s74, 0x3ff"]
    r[-1] += ["s_cmp_ge_u32 s75, s37", "s_cselect_b32 s75, 0, s75"]
    return r
def dma(buf):
    for g in dma_list(buf):
        for i in g: e(i)
dma(0)
srd(20, 42, WS_SIZE); srd(24, 56, 1792*1024); srd(32, 58, 1024); srd(28, 62, 256)
e("s_lshl_b32 s36, s3, 6"); e("v_add_u32 v253, s36, v0"); e("v_lshlrev_b32 v252, 2, v253")
e("s_lshl_b32 s36, s2, 13"); e("s_add_u32 s38, s36, 4096")
for q in range(8): e(f"buffer_load_dword v{208+q}, v252, s[24:27], s{36 if q < 4 else 38} offen offset:{1024*(q&3)}")
e("s_cmp_lt_u32 s3, 2"); e("s_cbranch_scc0 SL_DONE")
e("s_lshl_b32 s36, s2, 1"); e("s_add_u32 s76, s36, s3"); e("s_cmp_eq_u32 s76, 0"); e("s_cselect_b32 s36, 0x200, s76"); e("s_sub_u32 s36, 0, s36")
e("v_lshrrev_b32 v250, 4, v0"); e("v_add_u32 v251, 1, v250"); e("v_and_b32 v251, 2, v251"); e("v_cmp_ne_u32 vcc, 0, v251")
e("v_mov_b32 v251, s76"); e("v_mov_b32 v249, s36"); e("v_cndmask_b32 v251, v251, v249, vcc")
e("v_lshrrev_b32 v250, 1, v250"); e("v_lshl_add_u32 v251, v250, 10, v251"); e("v_and_b32 v251, 0x7ff, v251")
e("v_and_b32 v250, 15, v0"); e("v_lshlrev_b32 v250, 4, v250"); e("v_lshl_add_u32 v249, v251, 10, v250")
for q in range(4): e(f"buffer_load_dwordx4 {vr(216+4*q,4)}, v249, s[8:11], 0 offen offset:{256*q}")
for q in range(4): e(f"buffer_load_dwordx4 {vr(232+4*q,4)}, v250, s[32:35], 0 offen offset:{256*q}")
lab("SL_DONE")
dma(1)
PF = int(OPT.get('pf2', 0)); PFK = int(OPT.get('pfk', 128 if PF == 1 else 192))
PFL = []
if PF:
    e("s_and_b32 s36, s3, 1"); e("s_lshl_b32 s36, s36, 5"); e("v_lshrrev_b32 v29, 1, v0"); e("v_add_u32 v29, s36, v29")
    e("s_and_b32 s36, s6, 7"); e(f"s_add_u32 s36, s36, {PFK}"); e("v_lshl_add_u32 v29, v29, 3, s36"); e("s_lshr_b32 s36, s71, 2")
    e("v_mul_lo_u32 v29, v29, s36"); e("v_and_b32 v30, 1, v0"); e("v_lshl_add_u32 v29, v30, 7, v29"); e("v_add_u32 v29, s70, v29")
    e("s_bitcmp1_b32 s7, 0"); e("s_cselect_b64 vcc, -1, 0"); e("v_cndmask_b32 v30, v2, v3, vcc"); e("v_cndmask_b32 v31, v4, v5, vcc")
    e("s_bitcmp1_b32 s7, 1"); e("s_cselect_b64 vcc, -1, 0"); e("v_cndmask_b32 v30, v30, v31, vcc"); e("v_and_b32 v30, 0xfffffc00, v30")
    e("v_and_b32 v31, 7, v0"); e(f"v_max_u32 v31, {PFK//64}, v31"); e("v_lshl_add_u32 v30, v31, 7, v30")
    def pfl(T):
        return ["s_cmp_lt_u32 s3, 2", f"s_cbranch_scc0 PFU{T}", "buffer_load_dword v254, v29, s[12:15], 0 offen", f"s_branch PFE{T}", f"PFU{T}:",
                "buffer_load_dword v254, v29, s[16:19], s39 offen", f"PFE{T}:", "buffer_load_dword v255, v30, s[8:11], 0 offen"]
    if PF == 1:
        for i in pfl("P"): e(i)
e("v_lshlrev_b32 v1, 4, v0")
e("s_lshl_b32 s77, s6, 4"); e("s_add_u32 s77, s77, s7"); e("s_lshl_b32 s36, s6, 1"); e("s_add_u32 s36, s36, s7"); e("s_add_u32 s36, s36, 242")
e("s_cmp_ge_u32 s7, 14"); e("s_cselect_b32 s77, s36, s77"); e("s_lshl_b32 s77, s77, 2"); e(f"s_add_u32 s77, s77, {FL_OFF}")
e("v_and_b32 v14, 31, v0"); e("v_lshrrev_b32 v15, 5, v0"); e("v_bfe_u32 v9, v0, 1, 3"); e("v_xor_b32 v9, v15, v9")
e("v_lshlrev_b32 v9, 4, v9"); e("v_lshl_add_u32 v8, v14, 7, v9")
for k in range(1, 4): e(f"v_xor_b32 v{8+k}, {32*k}, v8")
e("v_bfe_u32 v14, v0, 2, 2"); e("v_lshl_add_u32 v15, v15, 3, v14"); e("v_lshlrev_b32 v12, 8, v15")
e("v_xor_b32 v14, s3, v14"); e("v_lshl_add_u32 v12, v14, 6, v12"); e("v_bfe_u32 v14, v0, 4, 1"); e("v_lshl_add_u32 v12, v14, 5, v12")
e("v_and_b32 v14, 3, v0"); e("v_bfrev_b32 v15, v14"); e("v_lshrrev_b32 v15, 30, v15"); e("v_cndmask_b32 v14, v15, v14, s[68:69]")
e("v_lshl_add_u32 v12, v14, 3, v12"); e(f"v_add_u32 v12, {WB}, v12"); e("v_add_u32 v13, 0x10000, v12")
e("s_lshr_b32 s78, s4, 1"); e("s_lshl_b32 s78, s78, 3"); e("s_and_b32 s36, s5, 3"); e("s_lshl_b32 s36, s36, 1"); e("s_add_u32 s78, s78, s36")
e("s_and_b32 s36, s4, 1"); e("s_add_u32 s78, s78, s36"); e("s_lshr_b32 s79, s5, 2")
e("s_and_b32 s38, s78, 6"); e("s_add_u32 s38, s38, s79"); e(f"s_and_b32 s38, s38, {ROT >> 3}"); e("s_lshl_b32 s38, s38, 2")
e("s_mul_i32 s36, s3, 28"); e("s_add_u32 s36, s36, s38"); e("s_cmp_ge_u32 s36, 112"); e("s_cselect_b32 s36, 0, s36"); e("s_lshl_b32 s36, s36, 11")
e(f"s_mul_i32 s44, s78, {112*2048}"); e("s_add_u32 s80, s44, s36"); e(f"s_add_u32 s45, s44, {112*2048}")
e(f"s_mul_i32 s46, s79, {112*2048}"); e(f"s_add_u32 s46, s46, {WD_OFF}"); e("s_add_u32 s81, s46, s36"); e(f"s_add_u32 s47, s46, {112*2048}")
stamp(1)
e(f"s_waitcnt vmcnt({14 if PF == 1 else 12})")
e("v_mov_b32 v248, 0"); e("s_mov_b64 exec, 1"); e("buffer_store_dword v248, v248, s[20:23], s77 offen sc1"); e("s_mov_b64 exec, -1")
e("s_cmp_ge_u32 s2, 224"); e("s_cbranch_scc1 SJ_GATE")
e("s_mov_b32 s36, 0x05040100"); e("s_mov_b32 s38, 0x07060302")
for i in range(4): e(f"v_perm_b32 v{16+i}, v{209+2*i}, v{208+2*i}, s36"); e(f"v_perm_b32 v{20+i}, v{209+2*i}, v{208+2*i}, s38")
e("s_lshr_b32 s36, s2, 1"); e("s_lshl_b32 s36, s36, 11"); e("s_and_b32 s38, s2, 1"); e("s_lshl_b32 s38, s38, 9")
e("s_add_u32 s36, s36, s38"); e(f"s_add_u32 s36, s36, {WD_OFF}"); e(f"s_mov_b32 s38, {112*2048}")
for c in range(2):
    e(f"v_lshl_add_u32 v24, v253, 1, {c}")
    e("v_sub_u32 v25, 0x200, v24"); e("v_cmp_gt_u32 vcc, 0x100, v24"); e("v_and_b32 v25, 0xff, v25"); e("s_nop 0")
    e("v_cndmask_b32 v25, v25, v24, vcc")
    e("v_lshrrev_b32 v26, 5, v25"); e("v_mul_lo_u32 v26, v26, s38"); e("v_lshrrev_b32 v24, 8, v24"); e("v_lshl_add_u32 v26, v24, 10, v26")
    e("v_and_b32 v25, 31, v25"); e(f"v_lshl_add_u32 v{27+c}, v25, 4, v26")
    e(f"buffer_store_dwordx4 {vr(16+4*c,4)}, v{27+c}, s[20:23], s36 offen sc1")
lab("SJ_GATE")
e("s_cmp_lt_u32 s3, 2"); e("s_cbranch_scc0 SJ_DONE")
e("v_mov_b32 v208, 0"); e("v_mov_b32 v209, 0")
for i in range(16):
    e(f"v_lshlrev_b32 v210, 16, v{216+i}"); e(f"v_lshlrev_b32 v211, 16, v{232+i}")
    e(f"v_and_b32 v{216+i}, 0xffff0000, v{216+i}"); e(f"v_and_b32 v{232+i}, 0xffff0000, v{232+i}")
    e("v_fmac_f32 v208, v210, v211"); e("v_add_f32 v209, v209, v210")
    e(f"v_fmac_f32 v208, v{216+i}, v{232+i}"); e(f"v_sub_f32 v209, v209, v{216+i}")
for sh in (8, 4, 2, 1):
    e("s_nop 1")
    e(f"v_add_f32_dpp v208, v208, v208 row_ror:{sh} row_mask:0xf bank_mask:0xf")
    e(f"v_add_f32_dpp v209, v209, v209 row_ror:{sh} row_mask:0xf bank_mask:0xf")
e("v_mul_f32 v208, 0xbfb8aa3b, v208"); e("v_exp_f32 v208, v208"); e("v_sub_u32 v210, 0x800, v251"); e("v_add_f32 v208, 1.0, v208")
e("v_rcp_f32 v208, v208"); e("v_cmp_gt_u32 vcc, 0x400, v251"); e("v_and_b32 v210, 0x3ff, v210"); e("s_nop 0")
e("v_cndmask_b32 v210, v210, v251, vcc")
e("v_lshrrev_b32 v211, 6, v210"); e("v_lshlrev_b32 v211, 7, v211"); e("v_and_b32 v212, 1, v210"); e("v_lshl_add_u32 v211, v212, 6, v211")
e("v_bfe_u32 v212, v210, 1, 5"); e("v_add_u32 v211, v211, v212"); e("v_lshrrev_b32 v212, 10, v251"); e("v_lshl_add_u32 v211, v212, 5, v211")
e("v_lshlrev_b32 v211, 2, v211"); e(f"s_mov_b32 s36, {GT_OFF}")
e("s_mov_b32 exec_lo, 0x10001"); e("s_mov_b32 exec_hi, 0x10001")
e("buffer_store_dword v208, v211, s[20:23], s36 offen sc1"); e("s_mov_b64 exec, -1")
for g in range(4): e(f"v_readlane_b32 s{64+g}, v209, {16*g}")
e("s_nop 3")
e("v_mov_b32 v210, s66"); e("v_add_f32 v210, s65, v210")
e("s_cmp_eq_u32 s76, 0"); e("s_cselect_b32 s65, 0, s65"); e("s_cselect_b32 s66, 0, s66")
e("v_mov_b32 v211, s64"); e("v_add_f32 v211, s65, v211"); e("v_mov_b32 v212, s67"); e("v_add_f32 v212, s66, v212")
e("v_add_f32 v213, v211, v212"); e("v_sub_f32 v214, v211, v212"); e("v_cvt_pk_bf16_f32 v213, v213, v214")
e("s_lshr_b32 s36, s76, 4"); e("s_lshl_b32 s36, s36, 11"); e("s_and_b32 s38, s76, 8"); e("s_lshl_b32 s38, s38, 6")
e("s_add_u32 s36, s36, s38"); e("s_and_b32 s38, s76, 7"); e("s_lshl_b32 s38, s38, 1"); e("s_add_u32 s36, s36, s38")
e(f"s_add_u32 s36, s36, {EO_OFF + 1024}"); e(f"s_add_u32 s38, s36, {8*33*2048}")
e("s_mov_b64 exec, 1")
e("buffer_store_short v213, v248, s[20:23], s36 offen sc1"); e("buffer_store_short_d16_hi v213, v248, s[20:23], s38 offen sc1")
e("s_mov_b64 exec, -1")
e("s_cmp_eq_u32 s76, 0"); e("s_cbranch_scc0 SJ_DONE")
e("v_cvt_pk_bf16_f32 v216, v210, 0"); e("v_cmp_eq_u32 vcc, 0, v0"); e("v_mov_b32 v217, 0"); e("v_mov_b32 v218, 0"); e("v_mov_b32 v219, 0")
e("v_cndmask_b32 v216, 0, v216, vcc")
e(f"s_mov_b32 s36, {EO_OFF + 32*2048 + 1024}"); e(f"s_mov_b32 s38, {EO_OFF + (8*33+32)*2048 + 1024}")
e("s_mov_b32 exec_lo, 1"); e("s_mov_b32 exec_hi, 1")
e("buffer_store_dwordx4 v[216:219], v1, s[20:23], s36 offen sc1"); e("buffer_store_dwordx4 v[216:219], v1, s[20:23], s38 offen sc1")
e("s_mov_b64 exec, -1")
lab("SJ_DONE")
e("v_and_b32 v14, 3, v0"); e("v_lshlrev_b32 v14, 6, v14")
e("v_and_b32 v16, 31, v0"); e("v_lshlrev_b32 v16, 2, v16"); e("v_lshrrev_b32 v17, 5, v0"); e("v_lshlrev_b32 v17, 4, v17")
e("s_lshl_b32 s82, s6, 9"); e(f"s_add_u32 s82, s82, {GT_OFF}"); e("s_lshl_b32 s83, s78, 8"); e(f"s_add_u32 s83, s83, {GT_OFF}")
e("s_cmp_ge_u32 s7, 14"); e("s_cbranch_scc1 P1_DFT")
ACC, FA, FB, GV = 32, 160, 184, 224
def mainloop(dft):
    T = "D" if dft else "F"
    def reads(st, ks, F):
        buf = st % 3; r = []
        for u in range(2):
            for rh in range(2):
                off = buf*32768 + u*16384 + ks*4096 + rh*1024; a = 12
                if off >= 65536: off -= 65536; a = 13
                r.append(f"ds_read_b64_tr_b16 {vr(F+16+4*u+2*rh,2)}, v{a} offset:{off}")
        for f in range(4): r.append(f"ds_read_b128 {vr(F+4*f,4)}, v{8+ks} offset:{XB + buf*16384 + f*4096}")
        return r
    def kstep(F, first, rd, extra):
        for i in range(8):
            c = vr(ACC+16*i, 16); x, w = vr(F+4*(i>>1), 4), vr(F+16+4*(i&1), 4)
            e(f"v_mfma_f32_32x32x16_bf16 {c}, {x if dft else w}, {w if dft else x}, {'0' if first else c}")
            if rd: e(rd[i])
            if extra and (i & 1 or (len(extra) > 12 and NWD > 40)):
                for s in extra.pop(0): e(s)
    wd = []
    for s in range(28):
        for f in range(2): wd.append([f"buffer_load_dwordx4 {ar(8*s+4*f,4)}, v1, s[20:23], s81 offen offset:{2048*(s&1)+1024*f} sc1"])
        if s & 1: wd[-1] += ["s_add_u32 s81, s81, 4096", "s_cmp_ge_u32 s81, s47", "s_cselect_b32 s81, s46, s81"]
    gl = [[f"buffer_load_dword v{20+f}, v16, s[20:23], s82 offen offset:{128*f} sc1"] for f in range(4)]
    gl += [[f"buffer_load_dwordx4 {vr(GV+4*q,4)}, v17, s[20:23], s83 offen offset:{32*q} sc1"] for q in range(8)]
    wd = gl + wd
    global WDREST
    WDREST = wd[NWD:]
    e("s_barrier"); stamp(2)
    for r in reads(0, 0, FA): e(r)
    extra = dma_list(2)
    if PF == 2: extra[-1] += pfl(T)
    for st in range(8):
        e("s_waitcnt lgkmcnt(0)"); kstep(FA, st == 0, reads(st, 1, FB), extra)
        e("s_waitcnt lgkmcnt(0)"); kstep(FB, False, reads(st, 2, FA), extra)
        e("s_waitcnt lgkmcnt(0)"); kstep(FA, False, reads(st, 3, FB), extra)
        if st < 7:
            assert st == 6 or not extra
            e(f"s_waitcnt vmcnt({(14 if PF == 2 and st == 0 else 12) if st < 6 else NWD - len(extra)}) lgkmcnt(0)"); e("s_barrier")
            if st in (0, 2, 4, 5, 6): stamp({0:1, 2:4, 4:5, 5:6, 6:7}[st], 1)
            if st == 0:
                e("s_cmp_eq_u32 s3, 0"); e(f"s_cbranch_scc0 NOARR{T}"); e("s_and_b32 s36, s2, 3"); e("s_lshl_b32 s36, s36, 6")
                e("v_mov_b32 v15, 1"); e("s_mov_b64 exec, 1"); e("buffer_atomic_add v15, v248, s[28:31], s36 offen sc1"); e("s_mov_b64 exec, -1")
                lab(f"NOARR{T}")
            if st == 4: e("buffer_load_dword v15, v14, s[28:31], 0 offen sc1")
            if st == 5:
                e("s_mov_b32 s36, 0"); lab(f"C0CHK{T}"); e("v_cmp_gt_u32 vcc, 64, v15"); e(f"s_cbranch_vccz C0OK{T}")
                e("s_sleep 2"); e("buffer_load_dword v15, v14, s[28:31], 0 offen sc1"); e("s_add_u32 s36, s36, 1"); e("s_waitcnt vmcnt(0)")
                e("s_cmp_lt_u32 s36, 0x40000"); e(f"s_cbranch_scc1 C0CHK{T}"); lab(f"C0OK{T}"); extra = wd[:NWD]
            if st + 3 <= 7: extra = dma_list(st % 3)
            kstep(FB, False, reads(st+1, 0, FA), extra)
        else:
            e("s_waitcnt lgkmcnt(0)"); kstep(FB, False, None, extra)
    for g in extra:
        for s in g: e(s)
    stamp(3)
mainloop(False)
e("s_mul_i32 s36, s6, 224"); e("s_lshl_b32 s38, s7, 3"); e("s_add_u32 s36, s36, s38"); e("s_lshl_b32 s38, s3, 1"); e("s_add_u32 s36, s36, s38")
e("s_lshl_b32 s36, s36, 11"); e(f"s_add_u32 s38, s36, {112*2048}")
e(f"s_waitcnt vmcnt({NWD-12})")
for f in range(4): e(f"v_sub_f32 v{20+f}, 1.0, v{20+f}")
for f in range(4): e(f"v_rcp_f32 v{20+f}, v{20+f}")
e("s_mov_b32 s64, 0xbfb8aa3b"); e("s_mov_b32 s65, 0xbfb8aa3b")
for f in range(4): e(f"v_min_f32 v{24+2*f}, 0x71800000, v{20+f}"); e(f"v_min_f32 v{25+2*f}, 0x71800000, v{20+f}")
for f in range(4):
    g = ACC + 32*f; u = g + 16
    for h in range(2):
        P = [2*i for i in range(4)]
        for i in P: e(f"v_pk_mul_f32 {vr(FA+i,2)}, {vr(g+8*h+i,2)}, s[64:65]")
        for i in range(8): e(f"v_exp_f32 v{FA+i}, v{FA+i}")
        for i in P: e(f"v_pk_mul_f32 {vr(g+8*h+i,2)}, {vr(g+8*h+i,2)}, {vr(u+8*h+i,2)}")
        for i in P: e(f"v_pk_fma_f32 {vr(FA+i,2)}, {vr(FA+i,2)}, {vr(24+2*f,2)}, {vr(24+2*f,2)}")
        for i in range(8): e(f"v_rcp_f32 v{FA+i}, v{FA+i}")
        for i in P: e(f"v_pk_mul_f32 {vr(g+8*h+i,2)}, {vr(g+8*h+i,2)}, {vr(FA+i,2)}")
        d = u + 8*h
        for i in range(4): e(f"v_cvt_pk_bf16_f32 v{d+i}, v{g+8*h+2*i}, v{g+8*h+2*i+1}")
        e(f"buffer_store_dwordx4 {vr(d,4)}, v1, s[20:23], s{38 if f >> 1 else 36} offen offset:{2048*h + 1024*(f&1)} sc1")
lab("P1_DONE")
def csreg(k): return 168 + 8*k if k < 7 else 16 + 8*(k-7)
e("s_lshr_b32 s36, s78, 1"); e("s_lshl_b32 s36, s36, 6"); e("s_and_b32 s38, s78, 1"); e("s_add_u32 s70, s36, s38")
e("v_and_b32 v2, 31, v0"); e("v_lshl_add_u32 v2, v2, 1, s70"); e("v_cmp_eq_u32 s[64:65], 0, v2")
e("v_lshrrev_b32 v3, 5, v0"); e("s_lshl_b32 s36, s3, 7"); e("v_lshl_add_u32 v3, v3, 3, s36"); e("v_mul_lo_u32 v3, v3, v2")
e("v_cvt_f32_u32 v3, v3"); e("v_cvt_f32_u32 v2, v2"); e("v_mul_f32 v3, 0x3a000000, v3"); e("v_mul_f32 v2, 0x3a000000, v2")
e("v_mul_f32 v4, 0x41100000, v2"); e("v_mov_b32 v5, 0xbf803f80")
def csgen(k):
    r = csreg(k)
    e("v_fract_f32 v3, v3")
    for i in range(4):
        e("v_add_f32 v6, v3, v2"); e("v_cos_f32 v7, v3"); e("v_sin_f32 v8, -v3"); e("v_cos_f32 v9, v6"); e("v_sin_f32 v10, -v6")
        e(f"v_add_f32 v3, v6, v{2 if i < 3 else 4}")
        e(f"v_cvt_pk_bf16_f32 v{r+i}, v7, v9"); e(f"v_cvt_pk_bf16_f32 v{r+4+i}, v8, v10")
        e(f"v_cndmask_b32 v{r+4+i}, v{r+4+i}, v5, s[64:65]")
for g in WDREST[:NW2]:
    for x in g: e(x)
for k in range(NCS): csgen(k)
e(f"s_waitcnt vmcnt({len(WDREST[:NW2])})"); e("s_barrier")
e("v_mov_b32 v11, 1"); e("v_mov_b32 v12, 0"); e("s_cmp_eq_u32 s3, 0"); e("s_cselect_b64 exec, 1, 0"); e("s_cbranch_execz NOFLAG")
e("buffer_store_dword v11, v12, s[20:23], s77 offen sc1")
lab("NOFLAG"); e("s_mov_b64 exec, -1"); stamp(4)
rest = WDREST[NW2:]
for k in range(NCS, 9):
    for g in rest[:6]:
        for x in g: e(x)
    rest = rest[6:]
    csgen(k)
assert not rest
e("v_lshlrev_b32 v11, 2, v0"); e("v_add_u32 v11, 0x400, v11"); e("v_subrev_u32 v12, 32, v0"); e("v_min_u32 v12, 13, v12")
e("s_lshr_b32 s36, s78, 1"); e("s_lshl_b32 s36, s36, 6"); e("v_lshl_add_u32 v12, v12, 2, s36"); e("v_cmp_gt_u32 vcc, 32, v0")
e(f"s_mov_b32 s38, {FL_OFF}"); e("s_mov_b32 s36, 0"); e("v_cndmask_b32 v11, v12, v11, vcc")
e("s_and_b32 s82, s78, 1"); e("s_lshl_b32 s82, s82, 3"); e("s_add_u32 s82, s82, s79"); e("s_mul_i32 s82, s82, 33")
e("s_lshl_b32 s39, s3, 3"); e("s_add_u32 s82, s82, s39"); e("s_lshl_b32 s82, s82, 11"); e(f"s_add_u32 s82, s82, {EO_OFF}")
e("s_cmp_eq_u32 s3, 3"); e("s_cselect_b32 s39, 0, 0x40000000")
e("s_cmp_eq_u32 s3, 0"); e("s_cbranch_scc0 POLLOK")
lab("POLL"); e("buffer_load_dword v12, v11, s[20:23], s38 offen sc1"); e("s_add_u32 s36, s36, 1"); e("s_waitcnt vmcnt(0)")
e("v_cmp_ne_u32 vcc, 1, v12"); e("s_cbranch_vccz POLLOK"); e(f"s_sleep {OPT.get('slp', 4)}"); e("s_cmp_lt_u32 s36, 0x40000"); e("s_cbranch_scc1 POLL")
lab("POLLOK"); e("s_barrier"); stamp(5)
Q = []
hreg = {}
def ld(tag, dst, sreg, off):
    e(f"buffer_load_dwordx4 {dst}, v1, s[20:23], s{sreg} offen offset:{off} sc1"); Q.append(tag)
nh = [0]
def ldh(kind, base):
    s = nh[0]; nh[0] += 1; hreg[s] = (kind, base)
    for f in range(2): ld(('h', s), (ar if kind == 'a' else vr)(base+4*f, 4), 80, 2048*(s&1)+1024*f)
    if s & 1: e("s_add_u32 s80, s80, 4096"); e("s_cmp_ge_u32 s80, s45"); e("s_cselect_b32 s80, s44, s80")
def wait(tag):
    last = max(i for i, t in enumerate(Q) if t == tag); e(f"s_waitcnt vmcnt({len(Q)-1-last})")
for k in range(9):
    if k == 8: e("s_add_u32 s82, s82, s39")
    for f in range(2): ld(('e', k), vr(96+8*k+4*f, 4), 82, 2048*(k&1)+1024*f)
    if k & 1: e("s_add_u32 s82, s82, 4096")
for k in range(4): ldh('a', 224+8*k)
A2 = 32
for k in range(9):
    wait(('e', k))
    for i in range(4):
        c = vr(A2+16*i, 16); e(f"v_mfma_f32_32x32x16_bf16 {c}, {vr(csreg(k)+4*(i>>1),4)}, {vr(96+8*k+4*(i&1),4)}, {'0' if k == 0 else c}")
    ldh('v', csreg(k)); ldh('v', 96+8*k)
e("s_cmp_eq_u32 s79, 0"); e("s_cselect_b32 s24, 1, 0"); e("s_mov_b32 s25, s24")
e("s_cmp_eq_u32 s78, 0"); e("s_cselect_b32 s26, -1, 0"); e("s_mov_b32 s27, 0"); e("s_nop 7")
PP, PQ, QP, QQ = A2, A2+16, A2+32, A2+48
for i in range(16):
    e(f"v_sub_f32 v4, v{PP+i}, v{QQ+i}"); e(f"v_add_f32 v5, v{PP+i}, v{QQ+i}")
    e(f"v_cndmask_b32 v6, v4, v{PP+i}, s[24:25]"); e(f"v_cndmask_b32 v7, v5, v{PQ+i}, s[24:25]")
    e(f"v_cndmask_b32 v8, v5, v{PP+i}, s[24:25]"); e(f"v_cndmask_b32 v9, v4, v{PQ+i}, s[24:25]")
    if i == 0:
        e(f"v_cndmask_b32 v4, v{PP}, v{PQ}, s[24:25]"); e(f"v_cndmask_b32 v5, v{QP}, v{QQ}, s[24:25]")
        e(f"v_cndmask_b32 v6, v6, v{PP}, s[26:27]"); e(f"v_cndmask_b32 v7, v7, v4, s[26:27]")
        e(f"v_cndmask_b32 v8, v8, v{QP}, s[26:27]"); e(f"v_cndmask_b32 v9, v9, v5, s[26:27]")
    for q in range(4): e(f"v_mul_f32 v{A2+16*q+i}, v{GV+16*(q>>1)+i}, v{6+q}")
for k in range(4): ldh('v', GV+8*k)
for s in range(28):
    wait(('h', s)); kind, base = hreg[s]
    for i in range(4):
        c = vr(A2+16*i, 16); e(f"v_mfma_f32_32x32x16_bf16 {c}, {(ar if kind == 'a' else vr)(base+4*(i>>1),4)}, {ar(8*s+4*(i&1),4)}, {c}")
    if nh[0] < 28: ldh(kind, base)
stamp(6)
srd(8, 60, 2048*1024)
e("s_lshl_b32 s12, s3, 12"); e("v_add_u32 v2, s12, v1")
e("v_and_b32 v3, 31, v0"); e("s_lshl_b32 s12, s79, 5"); e("v_add_u32 v3, s12, v3")
e("v_sub_u32 v4, 0x200, v3"); e("v_mov_b32 v5, 0x100"); e("v_cndmask_b32 v4, v4, v5, s[24:25]")
e("s_and_b32 s12, s3, 1"); e("s_cselect_b64 s[28:29], -1, 0"); e("v_cndmask_b32 v3, v3, v4, s[28:29]")
e("v_lshrrev_b32 v4, 5, v0"); e("v_lshl_add_u32 v4, v4, 3, s70")
for qd in range(4):
    for q in range(4): e(f"ds_write_b128 v2, {vr(A2+16*qd+4*q,4)} offset:{qd*16384+q*1024}")
e("s_lshl_b32 s12, s3, 14"); e("v_add_u32 v2, s12, v1")
e("v_sub_u32 v5, 0x800, v4"); e("s_movk_i32 s12, 0x800"); e("s_cmp_ge_u32 s3, 2"); e("s_cselect_b64 s[28:29], -1, 0")
e("s_cselect_b32 s12, 0xfffff800, s12"); e("s_mul_i32 s13, s12, 5"); e("s_and_b64 s[26:27], s[26:27], s[28:29]")
e("v_cndmask_b32 v4, v4, v5, s[28:29]"); e("v_lshlrev_b32 v3, 1, v3"); e("v_lshl_add_u32 v4, v4, 10, v3")
e("v_add_u32 v5, 0x100000, v3"); e("v_cndmask_b32 v5, v4, v5, s[26:27]")
for i in range(1, 16): e(f"v_add_u32 v{6+i}, s{13 if (i & 3) == 0 else 12}, v{4 if i == 1 else 5+i}")
e("s_waitcnt lgkmcnt(0)"); e("s_barrier")
for q in range(4):
    for w in range(4): e(f"ds_read_b128 {vr(A2+16*w+4*q,4)}, v2 offset:{w*4096+q*1024}")
for q in range(4):
    e(f"s_waitcnt lgkmcnt({12-4*q})")
    for i in range(4*q, 4*q+4): e(f"v_add_f32 v{A2+i}, v{A2+i}, v{A2+16+i}"); e(f"v_add_f32 v{A2+32+i}, v{A2+32+i}, v{A2+48+i}")
    for i in range(4*q, 4*q+4): e(f"v_add_f32 v{A2+i}, v{A2+i}, v{A2+32+i}")
    for i in range(2*q, 2*q+2): e(f"v_cvt_pk_bf16_f32 v{96+i}, v{A2+2*i}, v{A2+2*i+1}")
    for i in range(4*q, 4*q+4): e(f"buffer_store_short{'_d16_hi' if i & 1 else ''} v{96+i//2}, v{5 if i == 0 else 6+i}, s[8:11], 0 offen")
if TS:
    e("s_waitcnt vmcnt(0)"); stamp(7); e("s_waitcnt lgkmcnt(0)"); e("s_mov_b64 exec, 1")
    for i in range(8): e(f"v_mov_b32 v{8+i}, s{84+2*i}")
    e("v_mov_b32 v16, 0"); e("s_lshl_b32 s36, s2, 3"); e("s_add_u32 s36, s36, s3"); e("s_lshl_b32 s36, s36, 5"); e(f"s_add_u32 s36, s36, {TS_OFF}")
    e("buffer_store_dwordx4 v[8:11], v16, s[20:23], s36 offen"); e("buffer_store_dwordx4 v[12:15], v16, s[20:23], s36 offen offset:16")
lab("K_END")
e("s_endpgm")
lab("P1_DFT")
mainloop(True)
e("s_cmp_eq_u32 s7, 14"); e("s_cselect_b32 s64, 1.0, -1.0")
e("s_mul_i32 s36, s3, 33"); e("s_lshl_b32 s36, s36, 11"); e("s_sub_u32 s38, s7, 14"); e("s_lshl_b32 s38, s38, 10")
e("s_add_u32 s36, s36, s38"); e(f"s_add_u32 s36, s36, {EO_OFF}")
e("s_lshl_b32 s38, s7, 2"); e("s_add_u32 s38, s38, s3"); e("s_cmp_eq_u32 s38, 60"); e("s_cselect_b32 s66, -2, -1"); e("s_mov_b32 s67, s66")
e("v_mov_b32 v25, 0"); e("v_mov_b32 v26, 0"); e("v_mov_b32 v27, 0"); e("v_cmp_gt_u32 vcc, 32, v0"); e("s_nop 7")
for u in range(2):
    R = [ACC + 32*f + 16*u for f in range(4)]
    e("s_cmp_eq_u32 s6, 0"); e(f"s_cbranch_scc0 DGEN{u}")
    e(f"v_fma_f32 v24, v{R[1]}, s64, v{R[2]}"); e("v_cvt_pk_bf16_f32 v24, v24, 0")
    e("v_cndmask_b32 v24, 0, v24, vcc"); e(f"v_cndmask_b32 v{R[1]}, v{R[1]}, v25, vcc"); e(f"v_cndmask_b32 v{R[2]}, v{R[2]}, v25, vcc")
    e(f"s_add_u32 s38, s36, {32*2048}"); e(f"s_add_u32 s39, s36, {(8*33+32)*2048}")
    if u == 0: e("s_mov_b64 exec, s[66:67]")
    e("buffer_store_dwordx4 v[24:27], v1, s[20:23], s38 offen sc1"); e("buffer_store_dwordx4 v[24:27], v1, s[20:23], s39 offen sc1")
    e("s_mov_b64 exec, -1")
    lab(f"DGEN{u}")
    e("s_lshl_b32 s38, s6, 12"); e("s_add_u32 s38, s36, s38"); e(f"s_add_u32 s39, s38, {8*33*2048}")
    for i in range(16): e(f"v_fma_f32 v{R[0]+i}, v{R[1]+i}, s64, v{R[0]+i}"); e(f"v_fma_f32 v{R[3]+i}, v{R[2]+i}, s64, v{R[3]+i}")
    for i in range(16): e(f"v_add_f32 v{R[1]+i}, v{R[0]+i}, v{R[3]+i}"); e(f"v_sub_f32 v{R[2]+i}, v{R[0]+i}, v{R[3]+i}")
    for p in range(2):
        for i in range(8): e(f"v_cvt_pk_bf16_f32 v{R[0]+8*p+i}, v{R[1+p]+2*i}, v{R[1+p]+2*i+1}")
    if u == 0: e("s_mov_b64 exec, s[66:67]")
    for p in range(2):
        for h in range(2): e(f"buffer_store_dwordx4 {vr(R[0]+8*p+4*h,4)}, v1, s[20:23], s{38+p} offen offset:{2048*h} sc1")
    e("s_mov_b64 exec, -1"); e(f"s_add_u32 s36, s36, {4*33*2048}")
e("s_branch P1_DONE")
L += ['.section .rodata,"a"', ".p2align 6", f".amdhsa_kernel {KN}", "  .amdhsa_next_free_vgpr 512", "  .amdhsa_next_free_sgpr 102",
      "  .amdhsa_accum_offset 256", "  .amdhsa_group_segment_fixed_size 0", "  .amdhsa_kernarg_size 104",
      "  .amdhsa_user_sgpr_count 2", "  .amdhsa_user_sgpr_kernarg_segment_ptr 1", "  .amdhsa_system_sgpr_workgroup_id_x 1", ".end_amdhsa_kernel"]
open(sys.argv[1], 'w').write("\n".join(L) + "\n")
```

```python
import sys
OPT = dict(a.split('=') for a in sys.argv[2:])
NAME = "gated_mix__spectral_fnet__swiglu_ffn__prompt"
KN = NAME + "_kernel"
L = []
NCS = int(OPT.get('ncs', 2))
NW2 = int(OPT.get('nw2', 0))
NWD = int(OPT.get('nwd', 36))
ROT = int(OPT.get('rot', 0))
def e(s): L.append("    " + s)
def lab(s): L.append(s + ":")
H_OFF = 0
WD_OFF = H_OFF + 32*112*2048
EO_OFF = WD_OFF + 8*112*2048
GT_OFF = EO_OFF + 16*33*2048
FL_OFF = GT_OFF + 8192
TS = int(OPT.get('ts', 0)); TS_OFF = 12427264
WS_SIZE = TS_OFF + 65536 if TS == 1 else FL_OFF + 2048
def srd(d, p, n):
    e(f"s_mov_b32 s{d}, s{p}"); e(f"s_mov_b32 s{d+1}, s{p+1}"); e(f"s_mov_b32 s{d+2}, {n}"); e(f"s_mov_b32 s{d+3}, 0x00020000")
def vr(a, n): return f"v[{a}:{a+n-1}]"
def ar(a, n): return f"a[{a}:{a+n-1}]"
def stamp(i, p=0):
    if OPT.get('pst') and i in (1, 4, 5, 6, 7) and not p: return
    if TS and (OPT.get('pst') or not p): e(f"s_memrealtime s[{84+2*i}:{85+2*i}]")
for l in open('cdna_kernels/' + NAME + '.s.ref').read().split('\n'):
    if l.startswith('; @launch'): break
    L.append(l)
L.append(f"; @launch {'kernel=' + KN + ' ' if TS == 1 else ''}grid=(256,1,1) block=(256,1,1) lds=147456")
L += ['.amdgcn_target "amdgcn-amd-amdhsa--gfx950"', ".text", f".globl {KN}", ".p2align 8", f".type {KN},@function"]
lab(KN)
e("s_cmp_ge_u32 s2, 256"); e("s_cbranch_scc1 K_END"); stamp(0)
e("s_load_dwordx2 s[40:41], s[0:1], 0")
e("s_load_dwordx4 s[44:47], s[0:1], 24")
e("s_load_dwordx8 s[52:59], s[0:1], 48")
e("s_load_dwordx4 s[60:63], s[0:1], 80")
e("s_load_dwordx2 s[42:43], s[0:1], 96")
e("v_lshrrev_b32 v1, 6, v0"); e("v_and_b32 v0, 63, v0"); e("v_readfirstlane_b32 s3, v1")
e("s_and_b32 s4, s2, 7"); e("s_lshr_b32 s5, s2, 3")
MAP = int(OPT.get('map', 0))
e("s_and_b32 s6, s4, 1"); e("s_lshl_b32 s6, s6, 3"); e("s_lshr_b32 s7, s5, 2" if MAP else "s_and_b32 s7, s5, 7"); e("s_add_u32 s6, s6, s7")
e("s_lshr_b32 s7, s4, 1"); e("s_lshl_b32 s7, s7, 2"); e("s_and_b32 s36, s5, 3" if MAP else "s_lshr_b32 s36, s5, 3"); e("s_add_u32 s7, s7, s36")
e("s_lshl_b32 s64, s6, 6"); e("s_lshr_b32 s36, s3, 1"); e("s_add_u32 s64, s64, s36"); e("s_lshl_b32 s37, s6, 5")
e("s_lshl_b32 s66, s36, 10"); e("s_add_u32 s38, s3, 1"); e("s_lshr_b32 s38, s38, 1")
e("s_cmp_ge_u32 s7, 14"); e("s_cselect_b64 s[68:69], -1, 0"); e("s_cselect_b32 s64, s37, s64"); e("s_cselect_b32 s66, s66, 0")
e("s_cselect_b32 s38, s38, s3"); e("s_movk_i32 s67, 0x400"); e("s_cselect_b32 s67, 0x200, s67")
e("s_movk_i32 s37, 3584"); e("s_cselect_b32 s37, 0x400, s37"); e("s_cselect_b32 s39, 0x100, 0")
e("s_lshl_b32 s70, s7, 8"); e("s_cmp_ge_u32 s7, 14"); e("s_cselect_b32 s70, 0, s70")
e("s_and_b32 s38, s38, 1"); e("s_cselect_b32 s65, -1, 1"); e("s_cselect_b32 s67, s67, 0")
e("v_lshrrev_b32 v8, 3, v0"); e("v_and_b32 v9, 3, v8"); e("v_and_b32 v10, 4, v8"); e("v_lshl_add_u32 v9, v10, 1, v9")
e("v_lshlrev_b32 v8, 1, v8"); e("v_cndmask_b32 v8, v8, v9, s[68:69]"); e("v_add_u32 v8, s64, v8")
e("v_lshrrev_b32 v10, 4, v0"); e("v_xor_b32 v11, v10, v0"); e("v_and_b32 v11, 7, v11"); e("v_lshlrev_b32 v11, 4, v11")
e("v_cmp_eq_u32 vcc, 0, v8"); e("v_mov_b32 v12, s67"); e("v_xor_b32 v13, 64, v11")
for q in range(4):
    if q == 0: e("v_cndmask_b32 v9, v8, v12, vcc")
    else:
        e(f"s_cmp_ge_u32 s7, 14"); e(f"s_cselect_b32 s36, {(4,16,20)[q-1]}, {16*q}"); e("v_add_u32 v9, s36, v8")
    e("v_mul_lo_u32 v9, v9, s65"); e("v_add_u32 v9, s66, v9"); e("v_and_b32 v9, 0x7ff, v9")
    e(f"v_lshl_add_u32 v{2+q}, v9, 10, v{13 if q & 1 else 11}")
e("v_lshlrev_b32 v9, 2, v10"); e("v_xor_b32 v9, v9, v0"); e("v_and_b32 v9, 15, v9")
e("s_lshl_b32 s36, s3, 4"); e("v_add_u32 v10, s36, v10"); e("v_mul_lo_u32 v10, v10, s37")
e("v_lshl_add_u32 v6, v9, 4, v10"); e("v_add_u32 v6, s70, v6"); e("v_add_u32 v7, s39, v6")
e("s_lshl_b32 s71, s37, 2"); e("s_mul_i32 s72, s37, 52"); e("s_lshl_b32 s73, s3, 12")
e("s_lshl_b32 s74, s7, 1"); e("s_add_u32 s74, s74, s6"); e(f"s_and_b32 s74, s74, {ROT & 7}")
e("s_mul_i32 s75, s74, s37"); e("s_lshl_b32 s75, s75, 6"); e("s_lshl_b32 s74, s74, 7")
e("s_lshl_b32 s37, s37, 9")
e("s_waitcnt lgkmcnt(0)")
srd(8, 40, 2048*1024)
e("s_cmp_eq_u32 s7, 14"); e("s_cselect_b32 s50, s44, s46"); e("s_cselect_b32 s51, s45, s47")
e("s_cmp_ge_u32 s7, 14"); e("s_cselect_b32 s48, s50, s52"); e("s_cselect_b32 s49, s51, s53"); e("s_cselect_b32 s50, s50, s54"); e("s_cselect_b32 s51, s51, s55")
srd(12, 48, "s37"); srd(16, 50, "s37")
if OPT.get('pf', '0') == '1':
    e("s_cmp_eq_u32 s3, 1"); e("s_cselect_b32 s24, s54, s52"); e("s_cselect_b32 s25, s55, s53")
    e("s_cmp_eq_u32 s3, 2"); e("s_cselect_b32 s24, s40, s24"); e("s_cselect_b32 s25, s41, s25"); e("s_movk_i32 s36, 7168"); e("s_cselect_b32 s36, 0x2000, s36")
    e("s_cmp_eq_u32 s3, 3"); e("s_cselect_b32 s24, s56, s24"); e("s_cselect_b32 s25, s57, s25")
    e("s_lshl_b32 s26, s36, 8"); e("s_mov_b32 s27, 0x00020000"); e("s_mul_i32 s36, s36, s2"); e("v_lshlrev_b32 v14, 7, v0")
    e("buffer_load_dword v15, v14, s[24:27], s36 offen")
XB, WB = 0, 49152
def dma_list(buf):
    r = []
    for q in range(4):
        r.append([f"s_add_u32 m0, s73, {XB + buf*16384 + q*1024}", "s_nop 0", f"buffer_load_dwordx4 v{2+q}, s[8:11], s74 offen lds"])
    for q in range(4):
        for u in range(2):
            r.append([f"s_add_u32 m0, s73, {WB + buf*32768 + u*16384 + q*1024}", "s_nop 0", f"buffer_load_dwordx4 v{6+u}, s[{12+4*u}:{15+4*u}], s75 offen lds"])
        r[-1].append(f"s_add_u32 s75, s75, s{71 if q < 3 else 72}")
    r[3] += ["s_add_u32 s74, s74, 128", "s_and_b32 s74, s74, 0x3ff"]
    r[-1] += ["s_cmp_ge_u32 s75, s37", "s_cselect_b32 s75, 0, s75"]
    return r
def dma(buf):
    for g in dma_list(buf):
        for i in g: e(i)
dma(0)
srd(20, 42, WS_SIZE); srd(24, 56, 1792*1024); srd(32, 58, 1024); srd(28, 62, 256)
e("s_lshl_b32 s36, s3, 6"); e("v_add_u32 v253, s36, v0"); e("v_lshlrev_b32 v252, 2, v253")
e("s_lshl_b32 s36, s2, 13"); e("s_add_u32 s38, s36, 4096")
for q in range(8): e(f"buffer_load_dword v{208+q}, v252, s[24:27], s{36 if q < 4 else 38} offen offset:{1024*(q&3)}")
e("s_cmp_lt_u32 s3, 2"); e("s_cbranch_scc0 SL_DONE")
e("s_lshl_b32 s36, s2, 1"); e("s_add_u32 s76, s36, s3"); e("s_cmp_eq_u32 s76, 0"); e("s_cselect_b32 s36, 0x200, s76"); e("s_sub_u32 s36, 0, s36")
e("v_lshrrev_b32 v250, 4, v0"); e("v_add_u32 v251, 1, v250"); e("v_and_b32 v251, 2, v251"); e("v_cmp_ne_u32 vcc, 0, v251")
e("v_mov_b32 v251, s76"); e("v_mov_b32 v249, s36"); e("v_cndmask_b32 v251, v251, v249, vcc")
e("v_lshrrev_b32 v250, 1, v250"); e("v_lshl_add_u32 v251, v250, 10, v251"); e("v_and_b32 v251, 0x7ff, v251")
e("v_and_b32 v250, 15, v0"); e("v_lshlrev_b32 v250, 4, v250"); e("v_lshl_add_u32 v249, v251, 10, v250")
for q in range(4): e(f"buffer_load_dwordx4 {vr(216+4*q,4)}, v249, s[8:11], 0 offen offset:{256*q}")
for q in range(4): e(f"buffer_load_dwordx4 {vr(232+4*q,4)}, v250, s[32:35], 0 offen offset:{256*q}")
lab("SL_DONE")
dma(1)
PF = int(OPT.get('pf2', 0)); PFK = int(OPT.get('pfk', 128 if PF == 1 else 192))
PFL = []
if PF:
    e("s_and_b32 s36, s3, 1"); e("s_lshl_b32 s36, s36, 5"); e("v_lshrrev_b32 v29, 1, v0"); e("v_add_u32 v29, s36, v29")
    e("s_and_b32 s36, s6, 7"); e(f"s_add_u32 s36, s36, {PFK}"); e("v_lshl_add_u32 v29, v29, 3, s36"); e("s_lshr_b32 s36, s71, 2")
    e("v_mul_lo_u32 v29, v29, s36"); e("v_and_b32 v30, 1, v0"); e("v_lshl_add_u32 v29, v30, 7, v29"); e("v_add_u32 v29, s70, v29")
    e("s_bitcmp1_b32 s7, 0"); e("s_cselect_b64 vcc, -1, 0"); e("v_cndmask_b32 v30, v2, v3, vcc"); e("v_cndmask_b32 v31, v4, v5, vcc")
    e("s_bitcmp1_b32 s7, 1"); e("s_cselect_b64 vcc, -1, 0"); e("v_cndmask_b32 v30, v30, v31, vcc"); e("v_and_b32 v30, 0xfffffc00, v30")
    e("v_and_b32 v31, 7, v0"); e(f"v_max_u32 v31, {PFK//64}, v31"); e("v_lshl_add_u32 v30, v31, 7, v30")
    def pfl(T):
        return ["s_cmp_lt_u32 s3, 2", f"s_cbranch_scc0 PFU{T}", "buffer_load_dword v254, v29, s[12:15], 0 offen", f"s_branch PFE{T}", f"PFU{T}:",
                "buffer_load_dword v254, v29, s[16:19], s39 offen", f"PFE{T}:", "buffer_load_dword v255, v30, s[8:11], 0 offen"]
    if PF == 1:
        for i in pfl("P"): e(i)
e("v_lshlrev_b32 v1, 4, v0")
e("s_lshl_b32 s77, s6, 4"); e("s_add_u32 s77, s77, s7"); e("s_lshl_b32 s36, s6, 1"); e("s_add_u32 s36, s36, s7"); e("s_add_u32 s36, s36, 242")
e("s_cmp_ge_u32 s7, 14"); e("s_cselect_b32 s77, s36, s77"); e("s_lshl_b32 s77, s77, 2"); e(f"s_add_u32 s77, s77, {FL_OFF}")
e("v_and_b32 v14, 31, v0"); e("v_lshrrev_b32 v15, 5, v0"); e("v_bfe_u32 v9, v0, 1, 3"); e("v_xor_b32 v9, v15, v9")
e("v_lshlrev_b32 v9, 4, v9"); e("v_lshl_add_u32 v8, v14, 7, v9")
for k in range(1, 4): e(f"v_xor_b32 v{8+k}, {32*k}, v8")
e("v_bfe_u32 v14, v0, 2, 2"); e("v_lshl_add_u32 v15, v15, 3, v14"); e("v_lshlrev_b32 v12, 8, v15")
e("v_xor_b32 v14, s3, v14"); e("v_lshl_add_u32 v12, v14, 6, v12"); e("v_bfe_u32 v14, v0, 4, 1"); e("v_lshl_add_u32 v12, v14, 5, v12")
e("v_and_b32 v14, 3, v0"); e("v_bfrev_b32 v15, v14"); e("v_lshrrev_b32 v15, 30, v15"); e("v_cndmask_b32 v14, v15, v14, s[68:69]")
e("v_lshl_add_u32 v12, v14, 3, v12"); e(f"v_add_u32 v12, {WB}, v12"); e("v_add_u32 v13, 0x10000, v12")
e("s_lshr_b32 s78, s4, 1"); e("s_lshl_b32 s78, s78, 3"); e("s_and_b32 s36, s5, 3"); e("s_lshl_b32 s36, s36, 1"); e("s_add_u32 s78, s78, s36")
e("s_and_b32 s36, s4, 1"); e("s_add_u32 s78, s78, s36"); e("s_lshr_b32 s79, s5, 2")
e("s_and_b32 s38, s78, 6"); e("s_add_u32 s38, s38, s79"); e(f"s_and_b32 s38, s38, {ROT >> 3}"); e("s_lshl_b32 s38, s38, 2")
e("s_mul_i32 s36, s3, 28"); e("s_add_u32 s36, s36, s38"); e("s_cmp_ge_u32 s36, 112"); e("s_cselect_b32 s36, 0, s36"); e("s_lshl_b32 s36, s36, 11")
e(f"s_mul_i32 s44, s78, {112*2048}"); e("s_add_u32 s80, s44, s36"); e(f"s_add_u32 s45, s44, {112*2048}")
e(f"s_mul_i32 s46, s79, {112*2048}"); e(f"s_add_u32 s46, s46, {WD_OFF}"); e("s_add_u32 s81, s46, s36"); e(f"s_add_u32 s47, s46, {112*2048}")
stamp(1)
e(f"s_waitcnt vmcnt({14 if PF == 1 else 12})")
e("v_mov_b32 v248, 0"); e("s_mov_b64 exec, 1"); e("buffer_store_dword v248, v248, s[20:23], s77 offen sc1"); e("s_mov_b64 exec, -1")
e("s_cmp_ge_u32 s2, 224"); e("s_cbranch_scc1 SJ_GATE")
e("s_mov_b32 s36, 0x05040100"); e("s_mov_b32 s38, 0x07060302")
for i in range(4): e(f"v_perm_b32 v{16+i}, v{209+2*i}, v{208+2*i}, s36"); e(f"v_perm_b32 v{20+i}, v{209+2*i}, v{208+2*i}, s38")
e("s_lshr_b32 s36, s2, 1"); e("s_lshl_b32 s36, s36, 11"); e("s_and_b32 s38, s2, 1"); e("s_lshl_b32 s38, s38, 9")
e("s_add_u32 s36, s36, s38"); e(f"s_add_u32 s36, s36, {WD_OFF}"); e(f"s_mov_b32 s38, {112*2048}")
for c in range(2):
    e(f"v_lshl_add_u32 v24, v253, 1, {c}")
    e("v_sub_u32 v25, 0x200, v24"); e("v_cmp_gt_u32 vcc, 0x100, v24"); e("v_and_b32 v25, 0xff, v25"); e("s_nop 0")
    e("v_cndmask_b32 v25, v25, v24, vcc")
    e("v_lshrrev_b32 v26, 5, v25"); e("v_mul_lo_u32 v26, v26, s38"); e("v_lshrrev_b32 v24, 8, v24"); e("v_lshl_add_u32 v26, v24, 10, v26")
    e("v_and_b32 v25, 31, v25"); e(f"v_lshl_add_u32 v{27+c}, v25, 4, v26")
    e(f"buffer_store_dwordx4 {vr(16+4*c,4)}, v{27+c}, s[20:23], s36 offen sc1")
lab("SJ_GATE")
e("s_cmp_lt_u32 s3, 2"); e("s_cbranch_scc0 SJ_DONE")
e("v_mov_b32 v208, 0"); e("v_mov_b32 v209, 0")
for i in range(16):
    e(f"v_lshlrev_b32 v210, 16, v{216+i}"); e(f"v_lshlrev_b32 v211, 16, v{232+i}")
    e(f"v_and_b32 v{216+i}, 0xffff0000, v{216+i}"); e(f"v_and_b32 v{232+i}, 0xffff0000, v{232+i}")
    e("v_fmac_f32 v208, v210, v211"); e("v_add_f32 v209, v209, v210")
    e(f"v_fmac_f32 v208, v{216+i}, v{232+i}"); e(f"v_sub_f32 v209, v209, v{216+i}")
for sh in (8, 4, 2, 1):
    e("s_nop 1")
    e(f"v_add_f32_dpp v208, v208, v208 row_ror:{sh} row_mask:0xf bank_mask:0xf")
    e(f"v_add_f32_dpp v209, v209, v209 row_ror:{sh} row_mask:0xf bank_mask:0xf")
e("v_mul_f32 v208, 0xbfb8aa3b, v208"); e("v_exp_f32 v208, v208"); e("v_sub_u32 v210, 0x800, v251"); e("v_add_f32 v208, 1.0, v208")
e("v_rcp_f32 v208, v208"); e("v_cmp_gt_u32 vcc, 0x400, v251"); e("v_and_b32 v210, 0x3ff, v210"); e("s_nop 0")
e("v_cndmask_b32 v210, v210, v251, vcc")
e("v_lshrrev_b32 v211, 6, v210"); e("v_lshlrev_b32 v211, 7, v211"); e("v_and_b32 v212, 1, v210"); e("v_lshl_add_u32 v211, v212, 6, v211")
e("v_bfe_u32 v212, v210, 1, 5"); e("v_add_u32 v211, v211, v212"); e("v_lshrrev_b32 v212, 10, v251"); e("v_lshl_add_u32 v211, v212, 5, v211")
e("v_lshlrev_b32 v211, 2, v211"); e(f"s_mov_b32 s36, {GT_OFF}")
e("s_mov_b32 exec_lo, 0x10001"); e("s_mov_b32 exec_hi, 0x10001")
e("buffer_store_dword v208, v211, s[20:23], s36 offen sc1"); e("s_mov_b64 exec, -1")
for g in range(4): e(f"v_readlane_b32 s{64+g}, v209, {16*g}")
e("s_nop 3")
e("v_mov_b32 v210, s66"); e("v_add_f32 v210, s65, v210")
e("s_cmp_eq_u32 s76, 0"); e("s_cselect_b32 s65, 0, s65"); e("s_cselect_b32 s66, 0, s66")
e("v_mov_b32 v211, s64"); e("v_add_f32 v211, s65, v211"); e("v_mov_b32 v212, s67"); e("v_add_f32 v212, s66, v212")
e("v_add_f32 v213, v211, v212"); e("v_sub_f32 v214, v211, v212"); e("v_cvt_pk_bf16_f32 v213, v213, v214")
e("s_lshr_b32 s36, s76, 4"); e("s_lshl_b32 s36, s36, 11"); e("s_and_b32 s38, s76, 8"); e("s_lshl_b32 s38, s38, 6")
e("s_add_u32 s36, s36, s38"); e("s_and_b32 s38, s76, 7"); e("s_lshl_b32 s38, s38, 1"); e("s_add_u32 s36, s36, s38")
e(f"s_add_u32 s36, s36, {EO_OFF + 1024}"); e(f"s_add_u32 s38, s36, {8*33*2048}")
e("s_mov_b64 exec, 1")
e("buffer_store_short v213, v248, s[20:23], s36 offen sc1"); e("buffer_store_short_d16_hi v213, v248, s[20:23], s38 offen sc1")
e("s_mov_b64 exec, -1")
e("s_cmp_eq_u32 s76, 0"); e("s_cbranch_scc0 SJ_DONE")
e("v_cvt_pk_bf16_f32 v216, v210, 0"); e("v_cmp_eq_u32 vcc, 0, v0"); e("v_mov_b32 v217, 0"); e("v_mov_b32 v218, 0"); e("v_mov_b32 v219, 0")
e("v_cndmask_b32 v216, 0, v216, vcc")
e(f"s_mov_b32 s36, {EO_OFF + 32*2048 + 1024}"); e(f"s_mov_b32 s38, {EO_OFF + (8*33+32)*2048 + 1024}")
e("s_mov_b32 exec_lo, 1"); e("s_mov_b32 exec_hi, 1")
e("buffer_store_dwordx4 v[216:219], v1, s[20:23], s36 offen sc1"); e("buffer_store_dwordx4 v[216:219], v1, s[20:23], s38 offen sc1")
e("s_mov_b64 exec, -1")
lab("SJ_DONE")
e("v_and_b32 v14, 3, v0"); e("v_lshlrev_b32 v14, 6, v14")
e("v_and_b32 v16, 31, v0"); e("v_lshlrev_b32 v16, 2, v16"); e("v_lshrrev_b32 v17, 5, v0"); e("v_lshlrev_b32 v17, 4, v17")
e("s_lshl_b32 s82, s6, 9"); e(f"s_add_u32 s82, s82, {GT_OFF}"); e("s_lshl_b32 s83, s78, 8"); e(f"s_add_u32 s83, s83, {GT_OFF}")
e("s_cmp_ge_u32 s7, 14"); e("s_cbranch_scc1 P1_DFT")
ACC, FA, FB, GV = 32, 160, 184, 224
def mainloop(dft):
    T = "D" if dft else "F"
    def reads(st, ks, F):
        buf = st % 3; r = []
        for u in range(2):
            for rh in range(2):
                off = buf*32768 + u*16384 + ks*4096 + rh*1024; a = 12
                if off >= 65536: off -= 65536; a = 13
                r.append(f"ds_read_b64_tr_b16 {vr(F+16+4*u+2*rh,2)}, v{a} offset:{off}")
        for f in range(4): r.append(f"ds_read_b128 {vr(F+4*f,4)}, v{8+ks} offset:{XB + buf*16384 + f*4096}")
        return r
    def kstep(F, first, rd, extra):
        for i in range(8):
            c = vr(ACC+16*i, 16); x, w = vr(F+4*(i>>1), 4), vr(F+16+4*(i&1), 4)
            e(f"v_mfma_f32_32x32x16_bf16 {c}, {x if dft else w}, {w if dft else x}, {'0' if first else c}")
            if rd: e(rd[i])
            if extra and (i & 1 or (len(extra) > 12 and NWD > 40)):
                for s in extra.pop(0): e(s)
    wd = []
    for s in range(28):
        for f in range(2): wd.append([f"buffer_load_dwordx4 {ar(8*s+4*f,4)}, v1, s[20:23], s81 offen offset:{2048*(s&1)+1024*f} sc1"])
        if s & 1: wd[-1] += ["s_add_u32 s81, s81, 4096", "s_cmp_ge_u32 s81, s47", "s_cselect_b32 s81, s46, s81"]
    gl = [[f"buffer_load_dword v{20+f}, v16, s[20:23], s82 offen offset:{128*f} sc1"] for f in range(4)]
    gl += [[f"buffer_load_dwordx4 {vr(GV+4*q,4)}, v17, s[20:23], s83 offen offset:{32*q} sc1"] for q in range(8)]
    wd = gl + wd
    global WDREST
    WDREST = wd[NWD:]
    e("s_barrier"); stamp(2)
    for r in reads(0, 0, FA): e(r)
    extra = dma_list(2)
    if PF == 2: extra[-1] += pfl(T)
    for st in range(8):
        e("s_waitcnt lgkmcnt(0)"); kstep(FA, st == 0, reads(st, 1, FB), extra)
        e("s_waitcnt lgkmcnt(0)"); kstep(FB, False, reads(st, 2, FA), extra)
        e("s_waitcnt lgkmcnt(0)"); kstep(FA, False, reads(st, 3, FB), extra)
        if st < 7:
            assert st == 6 or not extra
            e(f"s_waitcnt vmcnt({(14 if PF == 2 and st == 0 else 12) if st < 6 else NWD - len(extra)}) lgkmcnt(0)"); e("s_barrier")
            if st in (0, 2, 4, 5, 6): stamp({0:1, 2:4, 4:5, 5:6, 6:7}[st], 1)
            if st == 0:
                e("s_cmp_eq_u32 s3, 0"); e(f"s_cbranch_scc0 NOARR{T}"); e("s_and_b32 s36, s2, 3"); e("s_lshl_b32 s36, s36, 6")
                e("v_mov_b32 v15, 1"); e("s_mov_b64 exec, 1"); e("buffer_atomic_add v15, v248, s[28:31], s36 offen sc1"); e("s_mov_b64 exec, -1")
                lab(f"NOARR{T}")
            if st == 4: e("buffer_load_dword v15, v14, s[28:31], 0 offen sc1")
            if st == 5:
                e("s_mov_b32 s36, 0"); lab(f"C0CHK{T}"); e("v_cmp_gt_u32 vcc, 64, v15"); e(f"s_cbranch_vccz C0OK{T}")
                e("s_sleep 2"); e("buffer_load_dword v15, v14, s[28:31], 0 offen sc1"); e("s_add_u32 s36, s36, 1"); e("s_waitcnt vmcnt(0)")
                e("s_cmp_lt_u32 s36, 0x40000"); e(f"s_cbranch_scc1 C0CHK{T}"); lab(f"C0OK{T}"); extra = wd[:NWD]
            if st + 3 <= 7: extra = dma_list(st % 3)
            kstep(FB, False, reads(st+1, 0, FA), extra)
        else:
            e("s_waitcnt lgkmcnt(0)"); kstep(FB, False, None, extra)
    for g in extra:
        for s in g: e(s)
    stamp(3)
mainloop(False)
e("s_mul_i32 s36, s6, 224"); e("s_lshl_b32 s38, s7, 3"); e("s_add_u32 s36, s36, s38"); e("s_lshl_b32 s38, s3, 1"); e("s_add_u32 s36, s36, s38")
e("s_lshl_b32 s36, s36, 11"); e(f"s_add_u32 s38, s36, {112*2048}")
e(f"s_waitcnt vmcnt({NWD-12})")
for f in range(4): e(f"v_sub_f32 v{20+f}, 1.0, v{20+f}")
for f in range(4): e(f"v_rcp_f32 v{20+f}, v{20+f}")
e("s_mov_b32 s64, 0xbfb8aa3b"); e("s_mov_b32 s65, 0xbfb8aa3b")
for f in range(4): e(f"v_min_f32 v{24+2*f}, 0x71800000, v{20+f}"); e(f"v_min_f32 v{25+2*f}, 0x71800000, v{20+f}")
for f in range(4):
    g = ACC + 32*f; u = g + 16
    for h in range(2):
        P = [2*i for i in range(4)]
        for i in P: e(f"v_pk_mul_f32 {vr(FA+i,2)}, {vr(g+8*h+i,2)}, s[64:65]")
        for i in range(8): e(f"v_exp_f32 v{FA+i}, v{FA+i}")
        for i in P: e(f"v_pk_mul_f32 {vr(g+8*h+i,2)}, {vr(g+8*h+i,2)}, {vr(u+8*h+i,2)}")
        for i in P: e(f"v_pk_fma_f32 {vr(FA+i,2)}, {vr(FA+i,2)}, {vr(24+2*f,2)}, {vr(24+2*f,2)}")
        for i in range(8): e(f"v_rcp_f32 v{FA+i}, v{FA+i}")
        for i in P: e(f"v_pk_mul_f32 {vr(g+8*h+i,2)}, {vr(g+8*h+i,2)}, {vr(FA+i,2)}")
        d = u + 8*h
        for i in range(4): e(f"v_cvt_pk_bf16_f32 v{d+i}, v{g+8*h+2*i}, v{g+8*h+2*i+1}")
        e(f"buffer_store_dwordx4 {vr(d,4)}, v1, s[20:23], s{38 if f >> 1 else 36} offen offset:{2048*h + 1024*(f&1)} sc1")
lab("P1_DONE")
def csreg(k): return 168 + 8*k if k < 7 else 16 + 8*(k-7)
e("s_lshr_b32 s36, s78, 1"); e("s_lshl_b32 s36, s36, 6"); e("s_and_b32 s38, s78, 1"); e("s_add_u32 s70, s36, s38")
e("v_and_b32 v2, 31, v0"); e("v_lshl_add_u32 v2, v2, 1, s70"); e("v_cmp_eq_u32 s[64:65], 0, v2")
e("v_lshrrev_b32 v3, 5, v0"); e("s_lshl_b32 s36, s3, 7"); e("v_lshl_add_u32 v3, v3, 3, s36"); e("v_mul_lo_u32 v3, v3, v2")
e("v_cvt_f32_u32 v3, v3"); e("v_cvt_f32_u32 v2, v2"); e("v_mul_f32 v3, 0x3a000000, v3"); e("v_mul_f32 v2, 0x3a000000, v2")
e("v_mul_f32 v4, 0x41100000, v2"); e("v_mov_b32 v5, 0xbf803f80")
def csgen(k):
    r = csreg(k)
    e("v_fract_f32 v3, v3")
    for i in range(4):
        e("v_add_f32 v6, v3, v2"); e("v_cos_f32 v7, v3"); e("v_sin_f32 v8, -v3"); e("v_cos_f32 v9, v6"); e("v_sin_f32 v10, -v6")
        e(f"v_add_f32 v3, v6, v{2 if i < 3 else 4}")
        e(f"v_cvt_pk_bf16_f32 v{r+i}, v7, v9"); e(f"v_cvt_pk_bf16_f32 v{r+4+i}, v8, v10")
        e(f"v_cndmask_b32 v{r+4+i}, v{r+4+i}, v5, s[64:65]")
for g in WDREST[:NW2]:
    for x in g: e(x)
for k in range(NCS): csgen(k)
e(f"s_waitcnt vmcnt({len(WDREST[:NW2])})"); e("s_barrier")
e("v_mov_b32 v11, 1"); e("v_mov_b32 v12, 0"); e("s_cmp_eq_u32 s3, 0"); e("s_cselect_b64 exec, 1, 0"); e("s_cbranch_execz NOFLAG")
e("buffer_store_dword v11, v12, s[20:23], s77 offen sc1")
lab("NOFLAG"); e("s_mov_b64 exec, -1"); stamp(4)
rest = WDREST[NW2:]
for k in range(NCS, 9):
    for g in rest[:6]:
        for x in g: e(x)
    rest = rest[6:]
    csgen(k)
assert not rest
e("v_lshlrev_b32 v11, 2, v0"); e("v_add_u32 v11, 0x400, v11"); e("v_subrev_u32 v12, 32, v0"); e("v_min_u32 v12, 13, v12")
e("s_lshr_b32 s36, s78, 1"); e("s_lshl_b32 s36, s36, 6"); e("v_lshl_add_u32 v12, v12, 2, s36"); e("v_cmp_gt_u32 vcc, 32, v0")
e(f"s_mov_b32 s38, {FL_OFF}"); e("s_mov_b32 s36, 0"); e("v_cndmask_b32 v11, v12, v11, vcc")
e("s_and_b32 s82, s78, 1"); e("s_lshl_b32 s82, s82, 3"); e("s_add_u32 s82, s82, s79"); e("s_mul_i32 s82, s82, 33")
e("s_lshl_b32 s39, s3, 3"); e("s_add_u32 s82, s82, s39"); e("s_lshl_b32 s82, s82, 11"); e(f"s_add_u32 s82, s82, {EO_OFF}")
e("s_cmp_eq_u32 s3, 3"); e("s_cselect_b32 s39, 0, 0x40000000")
e("s_cmp_eq_u32 s3, 0"); e("s_cbranch_scc0 POLLOK")
lab("POLL"); e("buffer_load_dword v12, v11, s[20:23], s38 offen sc1"); e("s_add_u32 s36, s36, 1"); e("s_waitcnt vmcnt(0)")
e("v_cmp_ne_u32 vcc, 1, v12"); e("s_cbranch_vccz POLLOK"); e(f"s_sleep {OPT.get('slp', 4)}"); e("s_cmp_lt_u32 s36, 0x40000"); e("s_cbranch_scc1 POLL")
lab("POLLOK"); e("s_barrier"); stamp(5)
Q = []
hreg = {}
def ld(tag, dst, sreg, off):
    e(f"buffer_load_dwordx4 {dst}, v1, s[20:23], s{sreg} offen offset:{off} sc1"); Q.append(tag)
nh = [0]
def ldh(kind, base):
    s = nh[0]; nh[0] += 1; hreg[s] = (kind, base)
    for f in range(2): ld(('h', s), (ar if kind == 'a' else vr)(base+4*f, 4), 80, 2048*(s&1)+1024*f)
    if s & 1: e("s_add_u32 s80, s80, 4096"); e("s_cmp_ge_u32 s80, s45"); e("s_cselect_b32 s80, s44, s80")
def wait(tag):
    last = max(i for i, t in enumerate(Q) if t == tag); e(f"s_waitcnt vmcnt({len(Q)-1-last})")
for k in range(9):
    if k == 8: e("s_add_u32 s82, s82, s39")
    for f in range(2): ld(('e', k), vr(96+8*k+4*f, 4), 82, 2048*(k&1)+1024*f)
    if k & 1: e("s_add_u32 s82, s82, 4096")
for k in range(4): ldh('a', 224+8*k)
A2 = 32
for k in range(9):
    wait(('e', k))
    for i in range(4):
        c = vr(A2+16*i, 16); e(f"v_mfma_f32_32x32x16_bf16 {c}, {vr(csreg(k)+4*(i>>1),4)}, {vr(96+8*k+4*(i&1),4)}, {'0' if k == 0 else c}")
    ldh('v', csreg(k)); ldh('v', 96+8*k)
e("s_cmp_eq_u32 s79, 0"); e("s_cselect_b32 s24, 1, 0"); e("s_mov_b32 s25, s24")
e("s_cmp_eq_u32 s78, 0"); e("s_cselect_b32 s26, -1, 0"); e("s_mov_b32 s27, 0"); e("s_nop 7")
PP, PQ, QP, QQ = A2, A2+16, A2+32, A2+48
for i in range(16):
    e(f"v_sub_f32 v4, v{PP+i}, v{QQ+i}"); e(f"v_add_f32 v5, v{PP+i}, v{QQ+i}")
    e(f"v_cndmask_b32 v6, v4, v{PP+i}, s[24:25]"); e(f"v_cndmask_b32 v7, v5, v{PQ+i}, s[24:25]")
    e(f"v_cndmask_b32 v8, v5, v{PP+i}, s[24:25]"); e(f"v_cndmask_b32 v9, v4, v{PQ+i}, s[24:25]")
    if i == 0:
        e(f"v_cndmask_b32 v4, v{PP}, v{PQ}, s[24:25]"); e(f"v_cndmask_b32 v5, v{QP}, v{QQ}, s[24:25]")
        e(f"v_cndmask_b32 v6, v6, v{PP}, s[26:27]"); e(f"v_cndmask_b32 v7, v7, v4, s[26:27]")
        e(f"v_cndmask_b32 v8, v8, v{QP}, s[26:27]"); e(f"v_cndmask_b32 v9, v9, v5, s[26:27]")
    for q in range(4): e(f"v_mul_f32 v{A2+16*q+i}, v{GV+16*(q>>1)+i}, v{6+q}")
for k in range(4): ldh('v', GV+8*k)
for s in range(28):
    wait(('h', s)); kind, base = hreg[s]
    for i in range(4):
        c = vr(A2+16*i, 16); e(f"v_mfma_f32_32x32x16_bf16 {c}, {(ar if kind == 'a' else vr)(base+4*(i>>1),4)}, {ar(8*s+4*(i&1),4)}, {c}")
    if nh[0] < 28: ldh(kind, base)
stamp(6)
srd(8, 60, 2048*1024)
e("s_lshl_b32 s12, s3, 12"); e("v_add_u32 v2, s12, v1")
e("v_and_b32 v3, 31, v0"); e("s_lshl_b32 s12, s79, 5"); e("v_add_u32 v3, s12, v3")
e("v_sub_u32 v4, 0x200, v3"); e("v_mov_b32 v5, 0x100"); e("v_cndmask_b32 v4, v4, v5, s[24:25]")
e("s_and_b32 s12, s3, 1"); e("s_cselect_b64 s[28:29], -1, 0"); e("v_cndmask_b32 v3, v3, v4, s[28:29]")
e("v_lshrrev_b32 v4, 5, v0"); e("v_lshl_add_u32 v4, v4, 3, s70")
for qd in range(4):
    for q in range(4): e(f"ds_write_b128 v2, {vr(A2+16*qd+4*q,4)} offset:{qd*16384+q*1024}")
e("s_lshl_b32 s12, s3, 14"); e("v_add_u32 v2, s12, v1")
e("v_sub_u32 v5, 0x800, v4"); e("s_movk_i32 s12, 0x800"); e("s_cmp_ge_u32 s3, 2"); e("s_cselect_b64 s[28:29], -1, 0")
e("s_cselect_b32 s12, 0xfffff800, s12"); e("s_mul_i32 s13, s12, 5"); e("s_and_b64 s[26:27], s[26:27], s[28:29]")
e("v_cndmask_b32 v4, v4, v5, s[28:29]"); e("v_lshlrev_b32 v3, 1, v3"); e("v_lshl_add_u32 v4, v4, 10, v3")
e("v_add_u32 v5, 0x100000, v3"); e("v_cndmask_b32 v5, v4, v5, s[26:27]")
for i in range(1, 16): e(f"v_add_u32 v{6+i}, s{13 if (i & 3) == 0 else 12}, v{4 if i == 1 else 5+i}")
e("s_waitcnt lgkmcnt(0)"); e("s_barrier")
for q in range(4):
    for w in range(4): e(f"ds_read_b128 {vr(A2+16*w+4*q,4)}, v2 offset:{w*4096+q*1024}")
for q in range(4):
    e(f"s_waitcnt lgkmcnt({12-4*q})")
    for i in range(4*q, 4*q+4): e(f"v_add_f32 v{A2+i}, v{A2+i}, v{A2+16+i}"); e(f"v_add_f32 v{A2+32+i}, v{A2+32+i}, v{A2+48+i}")
    for i in range(4*q, 4*q+4): e(f"v_add_f32 v{A2+i}, v{A2+i}, v{A2+32+i}")
    for i in range(2*q, 2*q+2): e(f"v_cvt_pk_bf16_f32 v{96+i}, v{A2+2*i}, v{A2+2*i+1}")
    for i in range(4*q, 4*q+4): e(f"buffer_store_short{'_d16_hi' if i & 1 else ''} v{96+i//2}, v{5 if i == 0 else 6+i}, s[8:11], 0 offen {OPT.get('ost', '').replace('+', ' ')}")
if TS:
  if 1:
    e("s_waitcnt vmcnt(0)"); stamp(7); e("s_waitcnt lgkmcnt(0)"); e("s_mov_b64 exec, 1")
    for i in range(8): e(f"v_mov_b32 v{8+i}, s{84+2*i}")
  if TS == 2:
    srd(28, 62, 256); e("v_mov_b32 v16, 0"); e("v_not_b32 v17, v8"); e("s_cmp_eq_u32 s3, 0"); e("s_cbranch_scc0 K_END")
    e("buffer_atomic_umax v17, v16, s[28:31], 0 offen offset:4 sc1")
    for i in range(8): e(f"buffer_atomic_umax v{8+i}, v16, s[28:31], 0 offen offset:{8+4*i} sc1")
    for i in (2, 3, 5, 7): e(f"v_not_b32 v{8+i}, v{8+i}")
    for n, i in enumerate((2, 3, 5, 7)): e(f"buffer_atomic_umax v{8+i}, v16, s[28:31], 0 offen offset:{40+4*n} sc1")
  if TS == 1:
    e("v_mov_b32 v16, 0"); e("s_lshl_b32 s36, s2, 3"); e("s_add_u32 s36, s36, s3"); e("s_lshl_b32 s36, s36, 5"); e(f"s_add_u32 s36, s36, {TS_OFF}")
    e("buffer_store_dwordx4 v[8:11], v16, s[20:23], s36 offen"); e("buffer_store_dwordx4 v[12:15], v16, s[20:23], s36 offen offset:16")
lab("K_END")
e("s_endpgm")
lab("P1_DFT")
mainloop(True)
e("s_cmp_eq_u32 s7, 14"); e("s_cselect_b32 s64, 1.0, -1.0")
e("s_mul_i32 s36, s3, 33"); e("s_lshl_b32 s36, s36, 11"); e("s_sub_u32 s38, s7, 14"); e("s_lshl_b32 s38, s38, 10")
e("s_add_u32 s36, s36, s38"); e(f"s_add_u32 s36, s36, {EO_OFF}")
e("s_lshl_b32 s38, s7, 2"); e("s_add_u32 s38, s38, s3"); e("s_cmp_eq_u32 s38, 60"); e("s_cselect_b32 s66, -2, -1"); e("s_mov_b32 s67, s66")
e("v_mov_b32 v25, 0"); e("v_mov_b32 v26, 0"); e("v_mov_b32 v27, 0"); e("v_cmp_gt_u32 vcc, 32, v0"); e("s_nop 7")
for u in range(2):
    R = [ACC + 32*f + 16*u for f in range(4)]
    e("s_cmp_eq_u32 s6, 0"); e(f"s_cbranch_scc0 DGEN{u}")
    e(f"v_fma_f32 v24, v{R[1]}, s64, v{R[2]}"); e("v_cvt_pk_bf16_f32 v24, v24, 0")
    e("v_cndmask_b32 v24, 0, v24, vcc"); e(f"v_cndmask_b32 v{R[1]}, v{R[1]}, v25, vcc"); e(f"v_cndmask_b32 v{R[2]}, v{R[2]}, v25, vcc")
    e(f"s_add_u32 s38, s36, {32*2048}"); e(f"s_add_u32 s39, s36, {(8*33+32)*2048}")
    if u == 0: e("s_mov_b64 exec, s[66:67]")
    e("buffer_store_dwordx4 v[24:27], v1, s[20:23], s38 offen sc1"); e("buffer_store_dwordx4 v[24:27], v1, s[20:23], s39 offen sc1")
    e("s_mov_b64 exec, -1")
    lab(f"DGEN{u}")
    e("s_lshl_b32 s38, s6, 12"); e("s_add_u32 s38, s36, s38"); e(f"s_add_u32 s39, s38, {8*33*2048}")
    for i in range(16): e(f"v_fma_f32 v{R[0]+i}, v{R[1]+i}, s64, v{R[0]+i}"); e(f"v_fma_f32 v{R[3]+i}, v{R[2]+i}, s64, v{R[3]+i}")
    for i in range(16): e(f"v_add_f32 v{R[1]+i}, v{R[0]+i}, v{R[3]+i}"); e(f"v_sub_f32 v{R[2]+i}, v{R[0]+i}, v{R[3]+i}")
    for p in range(2):
        for i in range(8): e(f"v_cvt_pk_bf16_f32 v{R[0]+8*p+i}, v{R[1+p]+2*i}, v{R[1+p]+2*i+1}")
    if u == 0: e("s_mov_b64 exec, s[66:67]")
    for p in range(2):
        for h in range(2): e(f"buffer_store_dwordx4 {vr(R[0]+8*p+4*h,4)}, v1, s[20:23], s{38+p} offen offset:{2048*h} sc1")
    e("s_mov_b64 exec, -1"); e(f"s_add_u32 s36, s36, {4*33*2048}")
e("s_branch P1_DONE")
L += ['.section .rodata,"a"', ".p2align 6", f".amdhsa_kernel {KN}", "  .amdhsa_next_free_vgpr 512", "  .amdhsa_next_free_sgpr 102",
      "  .amdhsa_accum_offset 256", "  .amdhsa_group_segment_fixed_size 0", "  .amdhsa_kernarg_size 104",
      "  .amdhsa_user_sgpr_count 2", "  .amdhsa_user_sgpr_kernarg_segment_ptr 1", "  .amdhsa_system_sgpr_workgroup_id_x 1", ".end_amdhsa_kernel"]
open(sys.argv[1], 'w').write("\n".join(L) + "\n")
```

```python
import sys
OPT = dict(a.split('=') for a in sys.argv[2:])
NAME = "gated_mix__spectral_fnet__swiglu_ffn__prompt"
KN = NAME + "_kernel"
L = []
NCS = int(OPT.get('ncs', 2))
NW2 = int(OPT.get('nw2', 0))
NWD = int(OPT.get('nwd', 36)); CST = int(OPT.get('cst', 5)); ESL = {0:(), 2:(2,6), 3:(0,2,6), 4:(0,2,4,6)}[int(OPT.get('wr', 3))]
ROT = int(OPT.get('rot', 0))
def e(s): L.append("    " + s)
def lab(s): L.append(s + ":")
H_OFF = 0
WD_OFF = H_OFF + 32*112*2048
EO_OFF = WD_OFF + 8*112*2048
GT_OFF = EO_OFF + 16*33*2048
FL_OFF = GT_OFF + 8192
TS = int(OPT.get('ts', 0)); TS_OFF = 12427264
WS_SIZE = TS_OFF + 65536 if TS == 1 else FL_OFF + 4096
def srd(d, p, n):
    e(f"s_mov_b32 s{d}, s{p}"); e(f"s_mov_b32 s{d+1}, s{p+1}"); e(f"s_mov_b32 s{d+2}, {n}"); e(f"s_mov_b32 s{d+3}, 0x00020000")
def vr(a, n): return f"v[{a}:{a+n-1}]"
def ar(a, n): return f"a[{a}:{a+n-1}]"
def stamp(i, p=0):
    if OPT.get('pst') and i in (1, 4, 5, 6, 7) and not p: return
    if TS and (OPT.get('pst') or not p): e(f"s_memrealtime s[{84+2*i}:{85+2*i}]")
for l in open('cdna_kernels/' + NAME + '.s.ref').read().split('\n'):
    if l.startswith('; @launch'): break
    L.append(l)
L.append(f"; @launch {'kernel=' + KN + ' ' if TS == 1 else ''}grid=(256,1,1) block=(256,1,1) lds=147456")
L += ['.amdgcn_target "amdgcn-amd-amdhsa--gfx950"', ".text", f".globl {KN}", ".p2align 8", f".type {KN},@function"]
lab(KN)
e("s_cmp_ge_u32 s2, 256"); e("s_cbranch_scc1 K_END"); stamp(0)
e("s_load_dwordx2 s[40:41], s[0:1], 0")
e("s_load_dwordx4 s[44:47], s[0:1], 24")
e("s_load_dwordx8 s[52:59], s[0:1], 48")
e("s_load_dwordx4 s[60:63], s[0:1], 80")
e("s_load_dwordx2 s[42:43], s[0:1], 96")
if int(OPT.get('cpf', 0)):
    e("s_getpc_b64 s[36:37]"); lab("PCREF")
    e("v_lshlrev_b32 v2, 7, v0"); e("v_min_u32 v2, CODE_END-PCREF-4, v2"); e("v_mov_b32 v3, s37")
    e("v_add_co_u32 v2, vcc, s36, v2"); e("v_addc_co_u32 v3, vcc, 0, v3, vcc"); e("global_load_dword v255, v[2:3], off")
e("v_lshrrev_b32 v1, 6, v0"); e("v_and_b32 v0, 63, v0"); e("v_readfirstlane_b32 s3, v1")
e("s_and_b32 s4, s2, 7"); e("s_lshr_b32 s5, s2, 3")
MAP = int(OPT.get('map', 0))
e("s_and_b32 s6, s4, 1"); e("s_lshl_b32 s6, s6, 3"); e("s_lshr_b32 s7, s5, 2" if MAP else "s_and_b32 s7, s5, 7"); e("s_add_u32 s6, s6, s7")
e("s_lshr_b32 s7, s4, 1"); e("s_lshl_b32 s7, s7, 2"); e("s_and_b32 s36, s5, 3" if MAP else "s_lshr_b32 s36, s5, 3"); e("s_add_u32 s7, s7, s36")
if MAP == 2: e("s_lshl_b32 s6, s4, 1"); e("s_and_b32 s7, s5, 1"); e("s_add_u32 s6, s6, s7"); e("s_lshr_b32 s7, s5, 1")
e("s_lshl_b32 s64, s6, 6"); e("s_lshr_b32 s36, s3, 1"); e("s_add_u32 s64, s64, s36"); e("s_lshl_b32 s37, s6, 5")
e("s_lshl_b32 s66, s36, 10"); e("s_add_u32 s38, s3, 1"); e("s_lshr_b32 s38, s38, 1")
e("s_cmp_ge_u32 s7, 14"); e("s_cselect_b64 s[68:69], -1, 0"); e("s_cselect_b32 s64, s37, s64"); e("s_cselect_b32 s66, s66, 0")
e("s_cselect_b32 s38, s38, s3"); e("s_movk_i32 s67, 0x400"); e("s_cselect_b32 s67, 0x200, s67")
e("s_movk_i32 s37, 3584"); e("s_cselect_b32 s37, 0x400, s37"); e("s_cselect_b32 s39, 0x100, 0")
e("s_lshl_b32 s70, s7, 8"); e("s_cmp_ge_u32 s7, 14"); e("s_cselect_b32 s70, 0, s70")
e("s_and_b32 s38, s38, 1"); e("s_cselect_b32 s65, -1, 1"); e("s_cselect_b32 s67, s67, 0")
e("v_lshrrev_b32 v8, 3, v0"); e("v_and_b32 v9, 3, v8"); e("v_and_b32 v10, 4, v8"); e("v_lshl_add_u32 v9, v10, 1, v9")
e("v_lshlrev_b32 v8, 1, v8"); e("v_cndmask_b32 v8, v8, v9, s[68:69]"); e("v_add_u32 v8, s64, v8")
e("v_lshrrev_b32 v10, 4, v0"); e("v_xor_b32 v11, v10, v0"); e("v_and_b32 v11, 7, v11"); e("v_lshlrev_b32 v11, 4, v11")
e("v_cmp_eq_u32 vcc, 0, v8"); e("v_mov_b32 v12, s67"); e("v_xor_b32 v13, 64, v11")
for q in range(4):
    if q == 0: e("v_cndmask_b32 v9, v8, v12, vcc")
    else:
        e(f"s_cmp_ge_u32 s7, 14"); e(f"s_cselect_b32 s36, {(4,16,20)[q-1]}, {16*q}"); e("v_add_u32 v9, s36, v8")
    e("v_mul_lo_u32 v9, v9, s65"); e("v_add_u32 v9, s66, v9"); e("v_and_b32 v9, 0x7ff, v9")
    e(f"v_lshl_add_u32 v{2+q}, v9, 10, v{13 if q & 1 else 11}")
e("v_lshlrev_b32 v9, 2, v10"); e("v_xor_b32 v9, v9, v0"); e("v_and_b32 v9, 15, v9")
e("s_lshl_b32 s36, s3, 4"); e("v_add_u32 v10, s36, v10"); e("v_mul_lo_u32 v10, v10, s37")
e("v_lshl_add_u32 v6, v9, 4, v10"); e("v_add_u32 v6, s70, v6"); e("v_add_u32 v7, s39, v6")
e("s_lshl_b32 s71, s37, 2"); e("s_mul_i32 s72, s37, 52"); e("s_lshl_b32 s73, s3, 12")
e("s_lshl_b32 s74, s7, 1"); e("s_add_u32 s74, s74, s6"); e(f"s_and_b32 s74, s74, {ROT & 7}")
e("s_mul_i32 s75, s74, s37"); e("s_lshl_b32 s75, s75, 6"); e("s_lshl_b32 s74, s74, 7")
e("s_lshl_b32 s37, s37, 9")
e("s_waitcnt lgkmcnt(0)")
srd(8, 40, 2048*1024)
e("s_cmp_eq_u32 s7, 14"); e("s_cselect_b32 s50, s44, s46"); e("s_cselect_b32 s51, s45, s47")
e("s_cmp_ge_u32 s7, 14"); e("s_cselect_b32 s48, s50, s52"); e("s_cselect_b32 s49, s51, s53"); e("s_cselect_b32 s50, s50, s54"); e("s_cselect_b32 s51, s51, s55")
srd(12, 48, "s37"); srd(16, 50, "s37")
if OPT.get('pf', '0') == '1':
    e("s_cmp_eq_u32 s3, 1"); e("s_cselect_b32 s24, s54, s52"); e("s_cselect_b32 s25, s55, s53")
    e("s_cmp_eq_u32 s3, 2"); e("s_cselect_b32 s24, s40, s24"); e("s_cselect_b32 s25, s41, s25"); e("s_movk_i32 s36, 7168"); e("s_cselect_b32 s36, 0x2000, s36")
    e("s_cmp_eq_u32 s3, 3"); e("s_cselect_b32 s24, s56, s24"); e("s_cselect_b32 s25, s57, s25")
    e("s_lshl_b32 s26, s36, 8"); e("s_mov_b32 s27, 0x00020000"); e("s_mul_i32 s36, s36, s2"); e("v_lshlrev_b32 v14, 7, v0")
    e("buffer_load_dword v15, v14, s[24:27], s36 offen")
XB, WB = 0, 49152
def dma_list(buf):
    r = []
    for q in range(4):
        r.append([f"s_add_u32 m0, s73, {XB + buf*16384 + q*1024}", "s_nop 0", f"buffer_load_dwordx4 v{2+q}, s[8:11], s74 offen lds"])
    for q in range(4):
        for u in range(2):
            r.append([f"s_add_u32 m0, s73, {WB + buf*32768 + u*16384 + q*1024}", "s_nop 0", f"buffer_load_dwordx4 v{6+u}, s[{12+4*u}:{15+4*u}], s75 offen lds"])
        r[-1].append(f"s_add_u32 s75, s75, s{71 if q < 3 else 72}")
    r[3] += ["s_add_u32 s74, s74, 128", "s_and_b32 s74, s74, 0x3ff"]
    r[-1] += ["s_cmp_ge_u32 s75, s37", "s_cselect_b32 s75, 0, s75"]
    return r
def dma(buf):
    for g in dma_list(buf):
        for i in g: e(i)
dma(0)
srd(20, 42, WS_SIZE); srd(24, 56, 1792*1024); srd(32, 58, 1024); srd(28, 62, 256)
e("s_lshl_b32 s36, s3, 6"); e("v_add_u32 v253, s36, v0"); e("v_lshlrev_b32 v252, 2, v253")
e("s_lshl_b32 s36, s2, 13"); e("s_add_u32 s38, s36, 4096")
for q in range(8): e(f"buffer_load_dword v{208+q}, v252, s[24:27], s{36 if q < 4 else 38} offen offset:{1024*(q&3)}")
e("s_cmp_lt_u32 s3, 2"); e("s_cbranch_scc0 SL_DONE")
e("s_lshl_b32 s36, s2, 1"); e("s_add_u32 s76, s36, s3"); e("s_cmp_eq_u32 s76, 0"); e("s_cselect_b32 s36, 0x200, s76"); e("s_sub_u32 s36, 0, s36")
e("v_lshrrev_b32 v250, 4, v0"); e("v_add_u32 v251, 1, v250"); e("v_and_b32 v251, 2, v251"); e("v_cmp_ne_u32 vcc, 0, v251")
e("v_mov_b32 v251, s76"); e("v_mov_b32 v249, s36"); e("v_cndmask_b32 v251, v251, v249, vcc")
e("v_lshrrev_b32 v250, 1, v250"); e("v_lshl_add_u32 v251, v250, 10, v251"); e("v_and_b32 v251, 0x7ff, v251")
e("v_and_b32 v250, 15, v0"); e("v_lshlrev_b32 v250, 4, v250"); e("v_lshl_add_u32 v249, v251, 10, v250")
for q in range(4): e(f"buffer_load_dwordx4 {vr(216+4*q,4)}, v249, s[8:11], 0 offen offset:{256*q}")
for q in range(4): e(f"buffer_load_dwordx4 {vr(232+4*q,4)}, v250, s[32:35], 0 offen offset:{256*q}")
lab("SL_DONE")
dma(1)
PF = int(OPT.get('pf2', 0)); PFK = int(OPT.get('pfk', 128 if PF == 1 else 192))
PFL = []
if PF:
    e("s_and_b32 s36, s3, 1"); e("s_lshl_b32 s36, s36, 5"); e("v_lshrrev_b32 v29, 1, v0"); e("v_add_u32 v29, s36, v29")
    e("s_and_b32 s36, s6, 7"); e(f"s_add_u32 s36, s36, {PFK}"); e("v_lshl_add_u32 v29, v29, 3, s36"); e("s_lshr_b32 s36, s71, 2")
    e("v_mul_lo_u32 v29, v29, s36"); e("v_and_b32 v30, 1, v0"); e("v_lshl_add_u32 v29, v30, 7, v29"); e("v_add_u32 v29, s70, v29")
    e("s_bitcmp1_b32 s7, 0"); e("s_cselect_b64 vcc, -1, 0"); e("v_cndmask_b32 v30, v2, v3, vcc"); e("v_cndmask_b32 v31, v4, v5, vcc")
    e("s_bitcmp1_b32 s7, 1"); e("s_cselect_b64 vcc, -1, 0"); e("v_cndmask_b32 v30, v30, v31, vcc"); e("v_and_b32 v30, 0xfffffc00, v30")
    e("v_and_b32 v31, 7, v0"); e(f"v_max_u32 v31, {PFK//64}, v31"); e("v_lshl_add_u32 v30, v31, 7, v30")
    def pfl(T):
        return ["s_cmp_lt_u32 s3, 2", f"s_cbranch_scc0 PFU{T}", "buffer_load_dword v254, v29, s[12:15], 0 offen", f"s_branch PFE{T}", f"PFU{T}:",
                "buffer_load_dword v254, v29, s[16:19], s39 offen", f"PFE{T}:", "buffer_load_dword v255, v30, s[8:11], 0 offen"]
    if PF == 1:
        for i in pfl("P"): e(i)
e("v_lshlrev_b32 v1, 4, v0")
e("s_lshl_b32 s77, s6, 6"); e("s_add_u32 s77, s77, s7"); e("s_add_u32 s77, s77, 32"); e("s_lshl_b32 s36, s6, 1"); e("s_add_u32 s36, s36, s7"); e("s_sub_u32 s36, s36, 14")
e("s_cmp_ge_u32 s7, 14"); e("s_cselect_b32 s77, s36, s77"); e("s_lshl_b32 s77, s77, 2"); e(f"s_add_u32 s77, s77, {FL_OFF}")
e("v_and_b32 v14, 31, v0"); e("v_lshrrev_b32 v15, 5, v0"); e("v_bfe_u32 v9, v0, 1, 3"); e("v_xor_b32 v9, v15, v9")
e("v_lshlrev_b32 v9, 4, v9"); e("v_lshl_add_u32 v8, v14, 7, v9")
for k in range(1, 4): e(f"v_xor_b32 v{8+k}, {32*k}, v8")
e("v_bfe_u32 v14, v0, 2, 2"); e("v_lshl_add_u32 v15, v15, 3, v14"); e("v_lshlrev_b32 v12, 8, v15")
e("v_xor_b32 v14, s3, v14"); e("v_lshl_add_u32 v12, v14, 6, v12"); e("v_bfe_u32 v14, v0, 4, 1"); e("v_lshl_add_u32 v12, v14, 5, v12")
e("v_and_b32 v14, 3, v0"); e("v_bfrev_b32 v15, v14"); e("v_lshrrev_b32 v15, 30, v15"); e("v_cndmask_b32 v14, v15, v14, s[68:69]")
e("v_lshl_add_u32 v12, v14, 3, v12"); e(f"v_add_u32 v12, {WB}, v12"); e("v_add_u32 v13, 0x10000, v12")
e("s_lshr_b32 s78, s4, 1"); e("s_lshl_b32 s78, s78, 3"); e("s_and_b32 s36, s5, 3"); e("s_lshl_b32 s36, s36, 1"); e("s_add_u32 s78, s78, s36")
e("s_and_b32 s36, s4, 1"); e("s_add_u32 s78, s78, s36"); e("s_lshr_b32 s79, s5, 2")
if MAP == 2: e("s_lshl_b32 s78, s4, 2"); e("s_and_b32 s36, s5, 3"); e("s_add_u32 s78, s78, s36")
e("s_and_b32 s38, s78, 6"); e("s_add_u32 s38, s38, s79"); e(f"s_and_b32 s38, s38, {ROT >> 3}"); e("s_lshl_b32 s38, s38, 2")
e("s_mul_i32 s36, s3, 28"); e("s_add_u32 s36, s36, s38"); e("s_cmp_ge_u32 s36, 112"); e("s_cselect_b32 s36, 0, s36"); e("s_lshl_b32 s36, s36, 11")
e(f"s_mul_i32 s44, s78, {112*2048}"); e("s_add_u32 s80, s44, s36"); e(f"s_add_u32 s45, s44, {112*2048}")
e(f"s_mul_i32 s46, s79, {112*2048}"); e(f"s_add_u32 s46, s46, {WD_OFF}"); e("s_add_u32 s81, s46, s36"); e(f"s_add_u32 s47, s46, {112*2048}")
stamp(1)
e(f"s_waitcnt vmcnt({14 if PF == 1 else 12})")
e("s_and_b32 s68, s68, 0xfffe"); e("s_or_b32 s68, s68, 1"); e("s_mov_b32 s69, 0"); e("v_lshlrev_b32 v31, 8, v0")
e("v_mov_b32 v248, 0"); e("s_mov_b64 exec, s[68:69]"); e("buffer_store_dword v248, v31, s[20:23], s77 offen sc1"); e("s_mov_b64 exec, -1")
e("s_cmp_ge_u32 s2, 224"); e("s_cbranch_scc1 SJ_GATE")
e("s_mov_b32 s36, 0x05040100"); e("s_mov_b32 s38, 0x07060302")
for i in range(4): e(f"v_perm_b32 v{16+i}, v{209+2*i}, v{208+2*i}, s36"); e(f"v_perm_b32 v{20+i}, v{209+2*i}, v{208+2*i}, s38")
e("s_lshr_b32 s36, s2, 1"); e("s_lshl_b32 s36, s36, 11"); e("s_and_b32 s38, s2, 1"); e("s_lshl_b32 s38, s38, 9")
e("s_add_u32 s36, s36, s38"); e(f"s_add_u32 s36, s36, {WD_OFF}"); e(f"s_mov_b32 s38, {112*2048}")
for c in range(2):
    e(f"v_lshl_add_u32 v24, v253, 1, {c}")
    e("v_sub_u32 v25, 0x200, v24"); e("v_cmp_gt_u32 vcc, 0x100, v24"); e("v_and_b32 v25, 0xff, v25"); e("s_nop 0")
    e("v_cndmask_b32 v25, v25, v24, vcc")
    e("v_lshrrev_b32 v26, 5, v25"); e("v_mul_lo_u32 v26, v26, s38"); e("v_lshrrev_b32 v24, 8, v24"); e("v_lshl_add_u32 v26, v24, 10, v26")
    e("v_and_b32 v25, 31, v25"); e(f"v_lshl_add_u32 v{27+c}, v25, 4, v26")
    e(f"buffer_store_dwordx4 {vr(16+4*c,4)}, v{27+c}, s[20:23], s36 offen sc1")
lab("SJ_GATE")
e("s_cmp_lt_u32 s3, 2"); e("s_cbranch_scc0 SJ_DONE")
e("v_mov_b32 v208, 0"); e("v_mov_b32 v209, 0")
for i in range(16):
    e(f"v_lshlrev_b32 v210, 16, v{216+i}"); e(f"v_lshlrev_b32 v211, 16, v{232+i}")
    e(f"v_and_b32 v{216+i}, 0xffff0000, v{216+i}"); e(f"v_and_b32 v{232+i}, 0xffff0000, v{232+i}")
    e("v_fmac_f32 v208, v210, v211"); e("v_add_f32 v209, v209, v210")
    e(f"v_fmac_f32 v208, v{216+i}, v{232+i}"); e(f"v_sub_f32 v209, v209, v{216+i}")
for sh in (8, 4, 2, 1):
    e("s_nop 1")
    e(f"v_add_f32_dpp v208, v208, v208 row_ror:{sh} row_mask:0xf bank_mask:0xf")
    e(f"v_add_f32_dpp v209, v209, v209 row_ror:{sh} row_mask:0xf bank_mask:0xf")
e("v_mul_f32 v208, 0xbfb8aa3b, v208"); e("v_exp_f32 v208, v208"); e("v_sub_u32 v210, 0x800, v251"); e("v_add_f32 v208, 1.0, v208")
e("v_rcp_f32 v208, v208"); e("v_cmp_gt_u32 vcc, 0x400, v251"); e("v_and_b32 v210, 0x3ff, v210"); e("s_nop 0")
e("v_cndmask_b32 v210, v210, v251, vcc")
e("v_lshrrev_b32 v211, 6, v210"); e("v_lshlrev_b32 v211, 7, v211"); e("v_and_b32 v212, 1, v210"); e("v_lshl_add_u32 v211, v212, 6, v211")
e("v_bfe_u32 v212, v210, 1, 5"); e("v_add_u32 v211, v211, v212"); e("v_lshrrev_b32 v212, 10, v251"); e("v_lshl_add_u32 v211, v212, 5, v211")
e("v_lshlrev_b32 v211, 2, v211"); e(f"s_mov_b32 s36, {GT_OFF}")
e("s_mov_b32 exec_lo, 0x10001"); e("s_mov_b32 exec_hi, 0x10001")
e("buffer_store_dword v208, v211, s[20:23], s36 offen sc1"); e("s_mov_b64 exec, -1")
for g in range(4): e(f"v_readlane_b32 s{64+g}, v209, {16*g}")
e("s_nop 3")
e("v_mov_b32 v210, s66"); e("v_add_f32 v210, s65, v210")
e("s_cmp_eq_u32 s76, 0"); e("s_cselect_b32 s65, 0, s65"); e("s_cselect_b32 s66, 0, s66")
e("v_mov_b32 v211, s64"); e("v_add_f32 v211, s65, v211"); e("v_mov_b32 v212, s67"); e("v_add_f32 v212, s66, v212")
e("v_add_f32 v213, v211, v212"); e("v_sub_f32 v214, v211, v212"); e("v_cvt_pk_bf16_f32 v213, v213, v214")
e("s_lshr_b32 s36, s76, 4"); e("s_lshl_b32 s36, s36, 11"); e("s_and_b32 s38, s76, 8"); e("s_lshl_b32 s38, s38, 6")
e("s_add_u32 s36, s36, s38"); e("s_and_b32 s38, s76, 7"); e("s_lshl_b32 s38, s38, 1"); e("s_add_u32 s36, s36, s38")
e(f"s_add_u32 s36, s36, {EO_OFF + 1024}"); e(f"s_add_u32 s38, s36, {8*33*2048}")
e("s_mov_b64 exec, 1")
e("buffer_store_short v213, v248, s[20:23], s36 offen sc1"); e("buffer_store_short_d16_hi v213, v248, s[20:23], s38 offen sc1")
e("s_mov_b64 exec, -1")
e("s_cmp_eq_u32 s76, 0"); e("s_cbranch_scc0 SJ_DONE")
e("v_cvt_pk_bf16_f32 v216, v210, 0"); e("v_cmp_eq_u32 vcc, 0, v0"); e("v_mov_b32 v217, 0"); e("v_mov_b32 v218, 0"); e("v_mov_b32 v219, 0")
e("v_cndmask_b32 v216, 0, v216, vcc")
e(f"s_mov_b32 s36, {EO_OFF + 32*2048 + 1024}"); e(f"s_mov_b32 s38, {EO_OFF + (8*33+32)*2048 + 1024}")
e("s_mov_b32 exec_lo, 1"); e("s_mov_b32 exec_hi, 1")
e("buffer_store_dwordx4 v[216:219], v1, s[20:23], s36 offen sc1"); e("buffer_store_dwordx4 v[216:219], v1, s[20:23], s38 offen sc1")
e("s_mov_b64 exec, -1")
lab("SJ_DONE")
e("v_and_b32 v14, 3, v0"); e("v_lshlrev_b32 v14, 6, v14")
e("v_and_b32 v16, 31, v0"); e("v_lshlrev_b32 v16, 2, v16"); e("v_lshrrev_b32 v17, 5, v0"); e("v_lshlrev_b32 v17, 4, v17")
e("s_lshl_b32 s82, s6, 9"); e(f"s_add_u32 s82, s82, {GT_OFF}"); e("s_lshl_b32 s83, s78, 8"); e(f"s_add_u32 s83, s83, {GT_OFF}")
e("s_lshr_b32 s36, s78, 1"); e("s_lshl_b32 s36, s36, 6"); e("s_and_b32 s38, s78, 1"); e("s_add_u32 s70, s36, s38")
e("v_and_b32 v208, 31, v0"); e("v_lshl_add_u32 v208, v208, 1, s70"); e("v_cmp_eq_u32 s[64:65], 0, v208")
e("v_lshrrev_b32 v209, 5, v0"); e("s_lshl_b32 s36, s3, 7"); e("v_lshl_add_u32 v209, v209, 3, s36"); e("v_mul_lo_u32 v209, v209, v208")
CSA = 152
def cslist():
    r = ["v_cvt_f32_u32 v209, v209", "v_cvt_f32_u32 v208, v208", "v_mul_f32 v209, 0x3a000000, v209", "v_mul_f32 v208, 0x3a000000, v208",
         "v_mul_f32 v210, 0x41100000, v208", "v_mov_b32 v211, 0xbf803f80"]
    for k in range(9):
        r.append("v_fract_f32 v209, v209")
        for i in range(4):
            r += ["v_add_f32 v212, v209, v208", "v_cos_f32 v213, v209", "v_sin_f32 v214, -v209", f"v_add_f32 v209, v212, v{208 if i < 3 else 210}",
                  "v_cos_f32 v215, v212", "v_sin_f32 v216, -v212", "v_cvt_pk_bf16_f32 v217, v213, v215", "s_nop 0", "v_cvt_pk_bf16_f32 v218, v214, v216",
                  f"v_accvgpr_write_b32 a{CSA+8*k+i}, v217", "v_cndmask_b32 v218, v218, v211, s[64:65]", f"v_accvgpr_write_b32 a{CSA+8*k+4+i}, v218"]
    return [x for x in r if x != "s_nop 0"]
def wdreg(s_): return ar(8*s_, 8) if s_ < 19 else ar(224 + 8*(s_-19), 8) if s_ < 23 else vr(168 + 8*(s_-23), 8)
def sub(r, f):
    k, lo = r[0], int(r[2:r.index(':')]); return f"{k}[{lo+4*f}:{lo+4*f+3}]"
CSN = int(OPT.get('csn', 2))
e("s_cmp_ge_u32 s7, 14"); e("s_cbranch_scc1 P1_DFT")
ACC, FA, FB, GV = 32, 160, 184, 224
def mainloop(dft):
    T = "D" if dft else "F"
    def reads(st, ks, F):
        buf = st % 3; r = []
        for u in range(2):
            for rh in range(2):
                off = buf*32768 + u*16384 + ks*4096 + rh*1024; a = 12
                if off >= 65536: off -= 65536; a = 13
                r.append(f"ds_read_b64_tr_b16 {vr(F+16+4*u+2*rh,2)}, v{a} offset:{off}")
        for f in range(4): r.append(f"ds_read_b128 {vr(F+4*f,4)}, v{8+ks} offset:{XB + buf*16384 + f*4096}")
        return r
    def kstep(F, first, rd, extra):
        for i in range(8):
            c = vr(ACC+16*i, 16); x, w = vr(F+4*(i>>1), 4), vr(F+16+4*(i&1), 4)
            e(f"v_mfma_f32_32x32x16_bf16 {c}, {x if dft else w}, {w if dft else x}, {'0' if first else c}")
            if rd: e(rd[i])
            for _ in range(CSN):
                if cs: e(cs.pop(0))
            if extra and i & 1:
                for s in extra.pop(0): e(s)
                MQ.append('d')
            elif wq and (i & 1 or (i in ESL and dmaleft[0])):
                MQ.append('g' if NWD - len(wq) < 12 else 'w')
                for s in wq.pop(0): e(s)
    wd = []; cs = cslist(); wq = []; dmaleft = [True]
    global MQ
    MQ = []
    def after(n):
        idx = [i for i, t in enumerate(MQ) if t == 'd']; return len(MQ) - 1 - idx[n-1] if n else len(MQ)
    for s in range(28):
        for f in range(2): wd.append([f"buffer_load_dwordx4 {sub(wdreg(s),f)}, v1, s[20:23], s81 offen offset:{2048*(s&1)+1024*f} sc1"])
        if s & 1: wd[-1] += ["s_add_u32 s81, s81, 4096", "s_cmp_ge_u32 s81, s47", "s_cselect_b32 s81, s46, s81"]
    gl = [[f"buffer_load_dword v{20+f}, v16, s[20:23], s82 offen offset:{128*f} sc1"] for f in range(4)]
    gl += [[f"buffer_load_dwordx4 {vr(GV+4*q,4)}, v17, s[20:23], s83 offen offset:{32*q} sc1"] for q in range(8)]
    wd = gl + wd
    global WDREST
    WDREST = wd[NWD:]
    e("s_barrier"); stamp(2)
    for r in reads(0, 0, FA): e(r)
    extra = dma_list(2)
    if PF == 2: extra[-1] += pfl(T)
    for st in range(8):
        e("s_waitcnt lgkmcnt(0)"); kstep(FA, st == 0, reads(st, 1, FB), extra)
        e("s_waitcnt lgkmcnt(0)"); kstep(FB, False, reads(st, 2, FA), extra)
        e("s_waitcnt lgkmcnt(0)"); kstep(FA, False, reads(st, 3, FB), extra)
        if st < 7:
            assert not extra
            e(f"s_waitcnt vmcnt({min(63, after(12*st))}) lgkmcnt(0)"); e("s_barrier")
            if st in (0, 2, 4, 5, 6): stamp({0:1, 2:4, 4:5, 5:6, 6:7}[st], 1)
            if st == 0:
                e("s_cmp_eq_u32 s3, 0"); e(f"s_cbranch_scc0 NOARR{T}"); e("s_and_b32 s36, s2, 3"); e("s_lshl_b32 s36, s36, 6")
                e("v_mov_b32 v15, 1"); e("s_mov_b64 exec, 1"); e("buffer_atomic_add v15, v248, s[28:31], s36 offen sc1"); e("s_mov_b64 exec, -1")
                lab(f"NOARR{T}")
            if st == CST-1: e("buffer_load_dword v15, v14, s[28:31], 0 offen sc1")
            if st == 5: dmaleft[0] = False
            if st == CST:
                e("s_mov_b32 s36, 0"); lab(f"C0CHK{T}"); e("v_cmp_gt_u32 vcc, 64, v15"); e(f"s_cbranch_vccz C0OK{T}")
                e("s_sleep 2"); e("buffer_load_dword v15, v14, s[28:31], 0 offen sc1"); e("s_add_u32 s36, s36, 1"); e("s_waitcnt vmcnt(0)")
                e("s_cmp_lt_u32 s36, 0x40000"); e(f"s_cbranch_scc1 C0CHK{T}"); lab(f"C0OK{T}"); wq += wd[:NWD]
            if st + 3 <= 7: extra = dma_list(st % 3)
            kstep(FB, False, reads(st+1, 0, FA), extra)
        else:
            e("s_waitcnt lgkmcnt(0)"); kstep(FB, False, None, extra)
    print("left after loop", len(wq))
    for g in wq:
        MQ.append('w')
        for s in g: e(s)
    assert not cs
    stamp(3)
mainloop(False)
e("s_mul_i32 s36, s6, 224"); e("s_lshl_b32 s38, s7, 3"); e("s_add_u32 s36, s36, s38"); e("s_lshl_b32 s38, s3, 1"); e("s_add_u32 s36, s36, s38")
e("s_lshl_b32 s36, s36, 11"); e(f"s_add_u32 s38, s36, {112*2048}")
e(f"s_waitcnt vmcnt({min(63, len(MQ) - 1 - max(i for i, t in enumerate(MQ) if t == 'g'))})")
for f in range(4): e(f"v_sub_f32 v{20+f}, 1.0, v{20+f}")
for f in range(4): e(f"v_rcp_f32 v{20+f}, v{20+f}")
e("s_mov_b32 s64, 0xbfb8aa3b"); e("s_mov_b32 s65, 0xbfb8aa3b")
for f in range(4): e(f"v_min_f32 v{24+2*f}, 0x71800000, v{20+f}"); e(f"v_min_f32 v{25+2*f}, 0x71800000, v{20+f}")
for f in range(4):
    g = ACC + 32*f; u = g + 16
    for h in range(2):
        P = [2*i for i in range(4)]
        for i in P: e(f"v_pk_mul_f32 {vr(FA+i,2)}, {vr(g+8*h+i,2)}, s[64:65]")
        for i in range(8): e(f"v_exp_f32 v{FA+i}, v{FA+i}")
        for i in P: e(f"v_pk_mul_f32 {vr(g+8*h+i,2)}, {vr(g+8*h+i,2)}, {vr(u+8*h+i,2)}")
        for i in P: e(f"v_pk_fma_f32 {vr(FA+i,2)}, {vr(FA+i,2)}, {vr(24+2*f,2)}, {vr(24+2*f,2)}")
        for i in range(8): e(f"v_rcp_f32 v{FA+i}, v{FA+i}")
        for i in P: e(f"v_pk_mul_f32 {vr(g+8*h+i,2)}, {vr(g+8*h+i,2)}, {vr(FA+i,2)}")
        d = u + 8*h
        for i in range(4): e(f"v_cvt_pk_bf16_f32 v{d+i}, v{g+8*h+2*i}, v{g+8*h+2*i+1}")
        e(f"buffer_store_dwordx4 {vr(d,4)}, v1, s[20:23], s{38 if f >> 1 else 36} offen offset:{2048*h + 1024*(f&1)} sc1")
lab("P1_DONE")
for g in WDREST[:NW2]:
    for x in g: e(x)
e(f"s_waitcnt vmcnt({len(WDREST[:NW2])})"); e("s_barrier")
e("v_mov_b32 v11, 1"); e("v_lshlrev_b32 v12, 8, v0"); e("s_cmp_eq_u32 s3, 0"); e("s_cselect_b64 exec, s[68:69], 0"); e("s_cbranch_execz NOFLAG")
e("buffer_store_dword v11, v12, s[20:23], s77 offen sc1")
lab("NOFLAG"); e("s_mov_b64 exec, -1"); stamp(4)
NW3 = int(OPT.get('nw3', 99))
for g in WDREST[NW2:NW2+NW3]:
    for x in g: e(x)
WR = WDREST[NW2+NW3:]
e("v_min_u32 v11, 45, v0"); e("v_lshlrev_b32 v11, 2, v11"); e("s_lshr_b32 s38, s78, 1"); e("s_lshl_b32 s38, s38, 8")
e(f"s_add_u32 s38, s38, {FL_OFF}"); e("s_mov_b32 s36, 0")
e("s_and_b32 s82, s78, 1"); e("s_lshl_b32 s82, s82, 3"); e("s_add_u32 s82, s82, s79"); e("s_mul_i32 s82, s82, 33")
e("s_lshl_b32 s39, s3, 3"); e("s_add_u32 s82, s82, s39"); e("s_lshl_b32 s82, s82, 11"); e(f"s_add_u32 s82, s82, {EO_OFF}")
e("s_cmp_eq_u32 s3, 3"); e("s_cselect_b32 s39, 0, 0x40000000")
e("s_cmp_eq_u32 s3, 0"); e("s_cbranch_scc0 POLLOK")
lab("POLL"); e("buffer_load_dword v12, v11, s[20:23], s38 offen sc1"); e("s_add_u32 s36, s36, 1"); e("s_waitcnt vmcnt(0)")
e("v_cmp_ne_u32 vcc, 1, v12"); e("s_cbranch_vccz POLLOK"); e(f"s_sleep {OPT.get('slp', 4)}"); e("s_cmp_lt_u32 s36, 0x40000"); e("s_cbranch_scc1 POLL")
lab("POLLOK"); e("s_barrier"); stamp(5)
Q = []
hreg = {}
def ld(tag, dst, sreg, off):
    e(f"buffer_load_dwordx4 {dst}, v1, s[20:23], s{sreg} offen offset:{off} sc1"); Q.append(tag)
nh = [0]
def ldh(kind, base):
    s = nh[0]; nh[0] += 1; hreg[s] = (kind, base)
    for f in range(2): ld(('h', s), (ar if kind == 'a' else vr)(base+4*f, 4), 80, 2048*(s&1)+1024*f)
    if s & 1: e("s_add_u32 s80, s80, 4096"); e("s_cmp_ge_u32 s80, s45"); e("s_cselect_b32 s80, s44, s80")
def wait(tag):
    last = max(i for i, t in enumerate(Q) if t == tag or t == ('w', tag[1]) and tag[0] == 'h'); e(f"s_waitcnt vmcnt({min(63, len(Q)-1-last)})")
def ldw(n):
    for _ in range(n):
        if WR:
            Q.append(('w', 28 - (len(WR)+1)//2))
            for x in WR.pop(0): e(x)
for k in range(9):
    if k == 8: e("s_add_u32 s82, s82, s39")
    for f in range(2): ld(('e', k), vr(96+8*k+4*f, 4), 82, 2048*(k&1)+1024*f)
    if k & 1: e("s_add_u32 s82, s82, 4096")
for b in (208, 216, 16, 24): ldh('v', b)
A2 = 32
for k in range(9):
    wait(('e', k))
    for i in range(4):
        c = vr(A2+16*i, 16); e(f"v_mfma_f32_32x32x16_bf16 {c}, {ar(CSA+8*k+4*(i>>1),4)}, {vr(96+8*k+4*(i&1),4)}, {'0' if k == 0 else c}")
    ldh('a', CSA+8*k)
    if k == 8: ldh('v', 160)
    ldw(int(OPT.get('wn', 2)))
e("s_cmp_eq_u32 s79, 0"); e("s_cselect_b32 s24, 1, 0"); e("s_mov_b32 s25, s24")
e("s_cmp_eq_u32 s78, 0"); e("s_cselect_b32 s26, -1, 0"); e("s_mov_b32 s27, 0")
CB = []; e0 = e
def e(s): CB.append(s)
PP, PQ, QP, QQ = A2, A2+16, A2+32, A2+48
for i in range(16):
    e(f"v_sub_f32 v4, v{PP+i}, v{QQ+i}"); e(f"v_add_f32 v5, v{PP+i}, v{QQ+i}")
    e(f"v_cndmask_b32 v6, v4, v{PP+i}, s[24:25]"); e(f"v_cndmask_b32 v7, v5, v{PQ+i}, s[24:25]")
    e(f"v_cndmask_b32 v8, v5, v{PP+i}, s[24:25]"); e(f"v_cndmask_b32 v9, v4, v{PQ+i}, s[24:25]")
    if i == 0:
        e(f"v_cndmask_b32 v4, v{PP}, v{PQ}, s[24:25]"); e(f"v_cndmask_b32 v5, v{QP}, v{QQ}, s[24:25]")
        e(f"v_cndmask_b32 v6, v6, v{PP}, s[26:27]"); e(f"v_cndmask_b32 v7, v7, v4, s[26:27]")
        e(f"v_cndmask_b32 v8, v8, v{QP}, s[26:27]"); e(f"v_cndmask_b32 v9, v9, v5, s[26:27]")
    for q in range(4): e(f"v_mul_f32 v{A2+16*q+i}, v{GV+16*(q>>1)+i}, v{6+q}")
e = e0; B2 = 96; gvfree = False
for s in range(28):
    wait(('h', s)); kind, base = hreg[s]
    for i in range(4):
        c = vr(B2+16*i, 16); e(f"v_mfma_f32_32x32x16_bf16 {c}, {(ar if kind == 'a' else vr)(base+4*(i>>1),4)}, {sub(wdreg(s),i&1)}, {c if s else 0}")
        if s == 0 and i == 3: e("s_nop 7")
        for _ in range(int(OPT.get('cbn', 3))):
            if s and CB: e(CB.pop(0))
    if nh[0] < 28: ldh(kind, base)
    ldw(2); assert 28 - (len(WR)+1)//2 > s + 1 or not WR
assert not CB
stamp(6)
srd(8, 60, 2048*1024)
e("s_lshl_b32 s12, s3, 12"); e("v_add_u32 v2, s12, v1")
e("v_and_b32 v3, 31, v0"); e("s_lshl_b32 s12, s79, 5"); e("v_add_u32 v3, s12, v3")
e("v_sub_u32 v4, 0x200, v3"); e("v_mov_b32 v5, 0x100"); e("v_cndmask_b32 v4, v4, v5, s[24:25]")
e("s_and_b32 s12, s3, 1"); e("s_cselect_b64 s[28:29], -1, 0"); e("v_cndmask_b32 v3, v3, v4, s[28:29]")
e("v_lshrrev_b32 v4, 5, v0"); e("v_lshl_add_u32 v4, v4, 3, s70")
for qd in range(4):
    for q in range(8): e(f"v_pk_add_f32 {vr(A2+16*qd+2*q,2)}, {vr(A2+16*qd+2*q,2)}, {vr(B2+16*qd+2*q,2)}")
    for q in range(4): e(f"ds_write_b128 v2, {vr(A2+16*qd+4*q,4)} offset:{qd*16384+q*1024}")
e("s_lshl_b32 s12, s3, 14"); e("v_add_u32 v2, s12, v1")
e("v_sub_u32 v5, 0x800, v4"); e("s_movk_i32 s12, 0x800"); e("s_cmp_ge_u32 s3, 2"); e("s_cselect_b64 s[28:29], -1, 0")
e("s_cselect_b32 s12, 0xfffff800, s12"); e("s_mul_i32 s13, s12, 5"); e("s_and_b64 s[26:27], s[26:27], s[28:29]")
e("v_cndmask_b32 v4, v4, v5, s[28:29]"); e("v_lshlrev_b32 v3, 1, v3"); e("v_lshl_add_u32 v4, v4, 10, v3")
e("v_add_u32 v5, 0x100000, v3"); e("v_cndmask_b32 v5, v4, v5, s[26:27]")
for i in range(1, 16): e(f"v_add_u32 v{6+i}, s{13 if (i & 3) == 0 else 12}, v{4 if i == 1 else 5+i}")
e("s_waitcnt lgkmcnt(0)"); e("s_barrier")
for q in range(4):
    for w in range(4): e(f"ds_read_b128 {vr(A2+16*w+4*q,4)}, v2 offset:{w*4096+q*1024}")
for q in range(4):
    e(f"s_waitcnt lgkmcnt({12-4*q})")
    for i in range(4*q, 4*q+4): e(f"v_add_f32 v{A2+i}, v{A2+i}, v{A2+16+i}"); e(f"v_add_f32 v{A2+32+i}, v{A2+32+i}, v{A2+48+i}")
    for i in range(4*q, 4*q+4): e(f"v_add_f32 v{A2+i}, v{A2+i}, v{A2+32+i}")
    for i in range(2*q, 2*q+2): e(f"v_cvt_pk_bf16_f32 v{96+i}, v{A2+2*i}, v{A2+2*i+1}")
    for i in range(4*q, 4*q+4): e(f"buffer_store_short{'_d16_hi' if i & 1 else ''} v{96+i//2}, v{5 if i == 0 else 6+i}, s[8:11], 0 offen {OPT.get('ost', '').replace('+', ' ')}")
if TS:
  if 1:
    e("s_waitcnt vmcnt(0)"); stamp(7); e("s_waitcnt lgkmcnt(0)"); e("s_mov_b64 exec, 1")
    for i in range(8): e(f"v_mov_b32 v{8+i}, s{84+2*i}")
  if TS == 2:
    srd(28, 62, 256); e("v_mov_b32 v16, 0"); e("v_not_b32 v17, v8"); e("s_cmp_eq_u32 s3, 0"); e("s_cbranch_scc0 K_END")
    e("buffer_atomic_umax v17, v16, s[28:31], 0 offen offset:4 sc1")
    for i in range(8): e(f"buffer_atomic_umax v{8+i}, v16, s[28:31], 0 offen offset:{8+4*i} sc1")
    for i in (2, 3, 5, 7): e(f"v_not_b32 v{8+i}, v{8+i}")
    for n, i in enumerate((2, 3, 5, 7)): e(f"buffer_atomic_umax v{8+i}, v16, s[28:31], 0 offen offset:{40+4*n} sc1")
  if TS == 1:
    e("v_mov_b32 v16, 0"); e("s_lshl_b32 s36, s2, 3"); e("s_add_u32 s36, s36, s3"); e("s_lshl_b32 s36, s36, 5"); e(f"s_add_u32 s36, s36, {TS_OFF}")
    e("buffer_store_dwordx4 v[8:11], v16, s[20:23], s36 offen"); e("buffer_store_dwordx4 v[12:15], v16, s[20:23], s36 offen offset:16")
lab("K_END")
e("s_endpgm")
lab("P1_DFT")
mainloop(True)
e("s_cmp_eq_u32 s7, 14"); e("s_cselect_b32 s64, 1.0, -1.0")
e("s_mul_i32 s36, s3, 33"); e("s_lshl_b32 s36, s36, 11"); e("s_sub_u32 s38, s7, 14"); e("s_lshl_b32 s38, s38, 10")
e("s_add_u32 s36, s36, s38"); e(f"s_add_u32 s36, s36, {EO_OFF}")
e("s_lshl_b32 s38, s7, 2"); e("s_add_u32 s38, s38, s3"); e("s_cmp_eq_u32 s38, 60"); e("s_cselect_b32 s66, -2, -1"); e("s_mov_b32 s67, s66")
e("v_mov_b32 v25, 0"); e("v_mov_b32 v26, 0"); e("v_mov_b32 v27, 0"); e("v_cmp_gt_u32 vcc, 32, v0"); e("s_nop 7")
for u in range(2):
    R = [ACC + 32*f + 16*u for f in range(4)]
    e("s_cmp_eq_u32 s6, 0"); e(f"s_cbranch_scc0 DGEN{u}")
    e(f"v_fma_f32 v24, v{R[1]}, s64, v{R[2]}"); e("v_cvt_pk_bf16_f32 v24, v24, 0")
    e("v_cndmask_b32 v24, 0, v24, vcc"); e(f"v_cndmask_b32 v{R[1]}, v{R[1]}, v25, vcc"); e(f"v_cndmask_b32 v{R[2]}, v{R[2]}, v25, vcc")
    e(f"s_add_u32 s38, s36, {32*2048}"); e(f"s_add_u32 s39, s36, {(8*33+32)*2048}")
    if u == 0: e("s_mov_b64 exec, s[66:67]")
    e("buffer_store_dwordx4 v[24:27], v1, s[20:23], s38 offen sc1"); e("buffer_store_dwordx4 v[24:27], v1, s[20:23], s39 offen sc1")
    e("s_mov_b64 exec, -1")
    lab(f"DGEN{u}")
    e("s_lshl_b32 s38, s6, 12"); e("s_add_u32 s38, s36, s38"); e(f"s_add_u32 s39, s38, {8*33*2048}")
    for i in range(16): e(f"v_fma_f32 v{R[0]+i}, v{R[1]+i}, s64, v{R[0]+i}"); e(f"v_fma_f32 v{R[3]+i}, v{R[2]+i}, s64, v{R[3]+i}")
    for i in range(16): e(f"v_add_f32 v{R[1]+i}, v{R[0]+i}, v{R[3]+i}"); e(f"v_sub_f32 v{R[2]+i}, v{R[0]+i}, v{R[3]+i}")
    for p in range(2):
        for i in range(8): e(f"v_cvt_pk_bf16_f32 v{R[0]+8*p+i}, v{R[1+p]+2*i}, v{R[1+p]+2*i+1}")
    if u == 0: e("s_mov_b64 exec, s[66:67]")
    for p in range(2):
        for h in range(2): e(f"buffer_store_dwordx4 {vr(R[0]+8*p+4*h,4)}, v1, s[20:23], s{38+p} offen offset:{2048*h} sc1")
    e("s_mov_b64 exec, -1"); e(f"s_add_u32 s36, s36, {4*33*2048}")
e("s_branch P1_DONE"); lab("CODE_END")
L += ['.section .rodata,"a"', ".p2align 6", f".amdhsa_kernel {KN}", "  .amdhsa_next_free_vgpr 512", "  .amdhsa_next_free_sgpr 102",
      "  .amdhsa_accum_offset 256", "  .amdhsa_group_segment_fixed_size 0", "  .amdhsa_kernarg_size 104",
      "  .amdhsa_user_sgpr_count 2", "  .amdhsa_user_sgpr_kernarg_segment_ptr 1", "  .amdhsa_system_sgpr_workgroup_id_x 1", ".end_amdhsa_kernel"]
open(sys.argv[1], 'w').write("\n".join(L) + "\n")
```

```python
import sys
OPT = dict(a.split('=') for a in sys.argv[2:])
NAME = "gated_mix__spectral_fnet__swiglu_ffn__prompt"
KN = NAME + "_kernel"
L = []
NCS = int(OPT.get('ncs', 2))
NW2 = int(OPT.get('nw2', 0))
NWD = int(OPT.get('nwd', 36)); CST = int(OPT.get('cst', 5)); ESL = {0:(), 2:(2,6), 3:(0,2,6), 4:(0,2,4,6)}[int(OPT.get('wr', 3))]
ROT = int(OPT.get('rot', 0))
GX = int(OPT.get('gx', 0)); GCMP = 's_cmp_lt_u32 s4, 4' if GX else 's_cmp_lt_u32 s3, 2'
def e(s): L.append("    " + s)
def lab(s): L.append(s + ":")
H_OFF = 0
WD_OFF = H_OFF + 32*112*2048
EO_OFF = WD_OFF + 8*112*2048
GT_OFF = EO_OFF + 16*33*2048
FL_OFF = GT_OFF + 8192
TS = int(OPT.get('ts', 0)); TS_OFF = 12427264
WS_SIZE = TS_OFF + 65536 if TS == 1 else FL_OFF + 4096
def srd(d, p, n):
    e(f"s_mov_b32 s{d}, s{p}"); e(f"s_mov_b32 s{d+1}, s{p+1}"); e(f"s_mov_b32 s{d+2}, {n}"); e(f"s_mov_b32 s{d+3}, 0x00020000")
def vr(a, n): return f"v[{a}:{a+n-1}]"
def ar(a, n): return f"a[{a}:{a+n-1}]"
def stamp(i, p=0):
    if OPT.get('pst') and i in (1, 4, 5, 6, 7) and not p: return
    if TS and (OPT.get('pst') or not p): e(f"s_memrealtime s[{84+2*i}:{85+2*i}]")
for l in open('cdna_kernels/' + NAME + '.s.ref').read().split('\n'):
    if l.startswith('; @launch'): break
    L.append(l)
L.append(f"; @launch {'kernel=' + KN + ' ' if TS == 1 else ''}grid=(256,1,1) block=(256,1,1) lds=147456")
L += ['.amdgcn_target "amdgcn-amd-amdhsa--gfx950"', ".text", f".globl {KN}", ".p2align 8", f".type {KN},@function"]
lab(KN)
e("s_cmp_ge_u32 s2, 256"); e("s_cbranch_scc1 K_END"); stamp(0)
e("s_load_dwordx2 s[40:41], s[0:1], 0")
e("s_load_dwordx4 s[44:47], s[0:1], 24")
e("s_load_dwordx8 s[52:59], s[0:1], 48")
e("s_load_dwordx4 s[60:63], s[0:1], 80")
e("s_load_dwordx2 s[42:43], s[0:1], 96")
if int(OPT.get('cpf', 1)):
    e("s_getpc_b64 s[36:37]"); lab("PCREF")
    e("v_lshlrev_b32 v2, 7, v0"); e("v_min_u32 v2, CODE_END-PCREF-4, v2"); e("v_mov_b32 v3, s37")
    e("v_add_co_u32 v2, vcc, s36, v2"); e("v_addc_co_u32 v3, vcc, 0, v3, vcc"); e("global_load_dword v255, v[2:3], off")
e("v_lshrrev_b32 v1, 6, v0"); e("v_and_b32 v0, 63, v0"); e("v_readfirstlane_b32 s3, v1")
e("s_and_b32 s4, s2, 7"); e("s_lshr_b32 s5, s2, 3")
MAP = int(OPT.get('map', 0))
e("s_and_b32 s6, s4, 1"); e("s_lshl_b32 s6, s6, 3"); e("s_lshr_b32 s7, s5, 2" if MAP else "s_and_b32 s7, s5, 7"); e("s_add_u32 s6, s6, s7")
e("s_lshr_b32 s7, s4, 1"); e("s_lshl_b32 s7, s7, 2"); e("s_and_b32 s36, s5, 3" if MAP else "s_lshr_b32 s36, s5, 3"); e("s_add_u32 s7, s7, s36")
if MAP == 2: e("s_lshl_b32 s6, s4, 1"); e("s_and_b32 s7, s5, 1"); e("s_add_u32 s6, s6, s7"); e("s_lshr_b32 s7, s5, 1")
e("s_lshl_b32 s64, s6, 6"); e("s_lshr_b32 s36, s3, 1"); e("s_add_u32 s64, s64, s36"); e("s_lshl_b32 s37, s6, 5")
e("s_lshl_b32 s66, s36, 10"); e("s_add_u32 s38, s3, 1"); e("s_lshr_b32 s38, s38, 1")
e("s_cmp_ge_u32 s7, 14"); e("s_cselect_b64 s[68:69], -1, 0"); e("s_cselect_b32 s64, s37, s64"); e("s_cselect_b32 s66, s66, 0")
e("s_cselect_b32 s38, s38, s3"); e("s_movk_i32 s67, 0x400"); e("s_cselect_b32 s67, 0x200, s67")
e("s_movk_i32 s37, 3584"); e("s_cselect_b32 s37, 0x400, s37"); e("s_cselect_b32 s39, 0x100, 0")
e("s_lshl_b32 s70, s7, 8"); e("s_cmp_ge_u32 s7, 14"); e("s_cselect_b32 s70, 0, s70")
e("s_and_b32 s38, s38, 1"); e("s_cselect_b32 s65, -1, 1"); e("s_cselect_b32 s67, s67, 0")
e("v_lshrrev_b32 v8, 3, v0"); e("v_and_b32 v9, 3, v8"); e("v_and_b32 v10, 4, v8"); e("v_lshl_add_u32 v9, v10, 1, v9")
e("v_lshlrev_b32 v8, 1, v8"); e("v_cndmask_b32 v8, v8, v9, s[68:69]"); e("v_add_u32 v8, s64, v8")
e("v_lshrrev_b32 v10, 4, v0"); e("v_xor_b32 v11, v10, v0"); e("v_and_b32 v11, 7, v11"); e("v_lshlrev_b32 v11, 4, v11")
e("v_cmp_eq_u32 vcc, 0, v8"); e("v_mov_b32 v12, s67"); e("v_xor_b32 v13, 64, v11")
for q in range(4):
    if q == 0: e("v_cndmask_b32 v9, v8, v12, vcc")
    else:
        e(f"s_cmp_ge_u32 s7, 14"); e(f"s_cselect_b32 s36, {(4,16,20)[q-1]}, {16*q}"); e("v_add_u32 v9, s36, v8")
    e("v_mul_lo_u32 v9, v9, s65"); e("v_add_u32 v9, s66, v9"); e("v_and_b32 v9, 0x7ff, v9")
    e(f"v_lshl_add_u32 v{2+q}, v9, 10, v{13 if q & 1 else 11}")
e("v_lshlrev_b32 v9, 2, v10"); e("v_xor_b32 v9, v9, v0"); e("v_and_b32 v9, 15, v9")
e("s_lshl_b32 s36, s3, 4"); e("v_add_u32 v10, s36, v10"); e("v_mul_lo_u32 v10, v10, s37")
e("v_lshl_add_u32 v6, v9, 4, v10"); e("v_add_u32 v6, s70, v6"); e("v_add_u32 v7, s39, v6")
e("s_lshl_b32 s71, s37, 2"); e("s_mul_i32 s72, s37, 52"); e("s_lshl_b32 s73, s3, 12")
e("s_lshl_b32 s74, s7, 1"); e("s_add_u32 s74, s74, s6"); e(f"s_and_b32 s74, s74, {ROT & 7}")
e("s_mul_i32 s75, s74, s37"); e("s_lshl_b32 s75, s75, 6"); e("s_lshl_b32 s74, s74, 7")
e("s_lshl_b32 s37, s37, 9")
e("s_waitcnt lgkmcnt(0)")
srd(8, 40, 2048*1024)
e("s_cmp_eq_u32 s7, 14"); e("s_cselect_b32 s50, s44, s46"); e("s_cselect_b32 s51, s45, s47")
e("s_cmp_ge_u32 s7, 14"); e("s_cselect_b32 s48, s50, s52"); e("s_cselect_b32 s49, s51, s53"); e("s_cselect_b32 s50, s50, s54"); e("s_cselect_b32 s51, s51, s55")
srd(12, 48, "s37"); srd(16, 50, "s37")
if OPT.get('pf', '0') == '1':
    e("s_cmp_eq_u32 s3, 1"); e("s_cselect_b32 s24, s54, s52"); e("s_cselect_b32 s25, s55, s53")
    e("s_cmp_eq_u32 s3, 2"); e("s_cselect_b32 s24, s40, s24"); e("s_cselect_b32 s25, s41, s25"); e("s_movk_i32 s36, 7168"); e("s_cselect_b32 s36, 0x2000, s36")
    e("s_cmp_eq_u32 s3, 3"); e("s_cselect_b32 s24, s56, s24"); e("s_cselect_b32 s25, s57, s25")
    e("s_lshl_b32 s26, s36, 8"); e("s_mov_b32 s27, 0x00020000"); e("s_mul_i32 s36, s36, s2"); e("v_lshlrev_b32 v14, 7, v0")
    e("buffer_load_dword v15, v14, s[24:27], s36 offen")
XB, WB = 0, 49152
def dma_list(buf):
    r = []
    for q in range(4):
        r.append([f"s_add_u32 m0, s73, {XB + buf*16384 + q*1024}", "s_nop 0", f"buffer_load_dwordx4 v{2+q}, s[8:11], s74 offen lds"])
    for q in range(4):
        for u in range(2):
            r.append([f"s_add_u32 m0, s73, {WB + buf*32768 + u*16384 + q*1024}", "s_nop 0", f"buffer_load_dwordx4 v{6+u}, s[{12+4*u}:{15+4*u}], s75 offen lds"])
        r[-1].append(f"s_add_u32 s75, s75, s{71 if q < 3 else 72}")
    r[3] += ["s_add_u32 s74, s74, 128", "s_and_b32 s74, s74, 0x3ff"]
    r[-1] += ["s_cmp_ge_u32 s75, s37", "s_cselect_b32 s75, 0, s75"]
    return r
def dma(buf):
    for g in dma_list(buf):
        for i in g: e(i)
dma(0)
srd(20, 42, WS_SIZE); srd(24, 56, 1792*1024); srd(32, 58, 1024); srd(28, 62, 256)
e("s_lshl_b32 s36, s3, 6"); e("v_add_u32 v253, s36, v0"); e("v_lshlrev_b32 v252, 2, v253")
e("s_lshl_b32 s36, s2, 13"); e("s_add_u32 s38, s36, 4096")
for q in range(8): e(f"buffer_load_dword v{208+q}, v252, s[24:27], s{36 if q < 4 else 38} offen offset:{1024*(q&3)}")
e(GCMP); e("s_cbranch_scc0 SL_DONE")
if GX: e("s_lshl_b32 s36, s5, 2"); e("s_add_u32 s36, s36, s4"); e("s_lshl_b32 s36, s36, 2")
else: e("s_lshl_b32 s36, s2, 1")
e("s_add_u32 s76, s36, s3"); e("s_cmp_eq_u32 s76, 0"); e("s_cselect_b32 s36, 0x200, s76"); e("s_sub_u32 s36, 0, s36")
e("v_lshrrev_b32 v250, 4, v0"); e("v_add_u32 v251, 1, v250"); e("v_and_b32 v251, 2, v251"); e("v_cmp_ne_u32 vcc, 0, v251")
e("v_mov_b32 v251, s76"); e("v_mov_b32 v249, s36"); e("v_cndmask_b32 v251, v251, v249, vcc")
e("v_lshrrev_b32 v250, 1, v250"); e("v_lshl_add_u32 v251, v250, 10, v251"); e("v_and_b32 v251, 0x7ff, v251")
e("v_and_b32 v250, 15, v0"); e("v_lshlrev_b32 v250, 4, v250"); e("v_lshl_add_u32 v249, v251, 10, v250")
for q in range(4): e(f"buffer_load_dwordx4 {vr(216+4*q,4)}, v249, s[8:11], 0 offen offset:{256*q}")
for q in range(4): e(f"buffer_load_dwordx4 {vr(232+4*q,4)}, v250, s[32:35], 0 offen offset:{256*q}")
lab("SL_DONE")
dma(1)
PF = int(OPT.get('pf2', 0)); PFK = int(OPT.get('pfk', 128 if PF == 1 else 192))
PFL = []
if PF:
    e("s_and_b32 s36, s3, 1"); e("s_lshl_b32 s36, s36, 5"); e("v_lshrrev_b32 v29, 1, v0"); e("v_add_u32 v29, s36, v29")
    e("s_and_b32 s36, s6, 7"); e(f"s_add_u32 s36, s36, {PFK}"); e("v_lshl_add_u32 v29, v29, 3, s36"); e("s_lshr_b32 s36, s71, 2")
    e("v_mul_lo_u32 v29, v29, s36"); e("v_and_b32 v30, 1, v0"); e("v_lshl_add_u32 v29, v30, 7, v29"); e("v_add_u32 v29, s70, v29")
    e("s_bitcmp1_b32 s7, 0"); e("s_cselect_b64 vcc, -1, 0"); e("v_cndmask_b32 v30, v2, v3, vcc"); e("v_cndmask_b32 v31, v4, v5, vcc")
    e("s_bitcmp1_b32 s7, 1"); e("s_cselect_b64 vcc, -1, 0"); e("v_cndmask_b32 v30, v30, v31, vcc"); e("v_and_b32 v30, 0xfffffc00, v30")
    e("v_and_b32 v31, 7, v0"); e(f"v_max_u32 v31, {PFK//64}, v31"); e("v_lshl_add_u32 v30, v31, 7, v30")
    def pfl(T):
        return ["s_cmp_lt_u32 s3, 2", f"s_cbranch_scc0 PFU{T}", "buffer_load_dword v254, v29, s[12:15], 0 offen", f"s_branch PFE{T}", f"PFU{T}:",
                "buffer_load_dword v254, v29, s[16:19], s39 offen", f"PFE{T}:", "buffer_load_dword v255, v30, s[8:11], 0 offen"]
    if PF == 1:
        for i in pfl("P"): e(i)
e("v_lshlrev_b32 v1, 4, v0")
e("s_lshl_b32 s77, s6, 6"); e("s_add_u32 s77, s77, s7"); e("s_add_u32 s77, s77, 32"); e("s_lshl_b32 s36, s6, 1"); e("s_add_u32 s36, s36, s7"); e("s_sub_u32 s36, s36, 14")
e("s_cmp_ge_u32 s7, 14"); e("s_cselect_b32 s77, s36, s77"); e("s_lshl_b32 s77, s77, 2"); e(f"s_add_u32 s77, s77, {FL_OFF}")
e("v_and_b32 v14, 31, v0"); e("v_lshrrev_b32 v15, 5, v0"); e("v_bfe_u32 v9, v0, 1, 3"); e("v_xor_b32 v9, v15, v9")
e("v_lshlrev_b32 v9, 4, v9"); e("v_lshl_add_u32 v8, v14, 7, v9")
for k in range(1, 4): e(f"v_xor_b32 v{8+k}, {32*k}, v8")
e("v_bfe_u32 v14, v0, 2, 2"); e("v_lshl_add_u32 v15, v15, 3, v14"); e("v_lshlrev_b32 v12, 8, v15")
e("v_xor_b32 v14, s3, v14"); e("v_lshl_add_u32 v12, v14, 6, v12"); e("v_bfe_u32 v14, v0, 4, 1"); e("v_lshl_add_u32 v12, v14, 5, v12")
e("v_and_b32 v14, 3, v0"); e("v_bfrev_b32 v15, v14"); e("v_lshrrev_b32 v15, 30, v15"); e("v_cndmask_b32 v14, v15, v14, s[68:69]")
e("v_lshl_add_u32 v12, v14, 3, v12"); e(f"v_add_u32 v12, {WB}, v12"); e("v_add_u32 v13, 0x10000, v12")
e("s_lshr_b32 s78, s4, 1"); e("s_lshl_b32 s78, s78, 3"); e("s_and_b32 s36, s5, 3"); e("s_lshl_b32 s36, s36, 1"); e("s_add_u32 s78, s78, s36")
e("s_and_b32 s36, s4, 1"); e("s_add_u32 s78, s78, s36"); e("s_lshr_b32 s79, s5, 2")
if MAP == 2: e("s_lshl_b32 s78, s4, 2"); e("s_and_b32 s36, s5, 3"); e("s_add_u32 s78, s78, s36")
e("s_and_b32 s38, s78, 6"); e("s_add_u32 s38, s38, s79"); e(f"s_and_b32 s38, s38, {ROT >> 3}"); e("s_lshl_b32 s38, s38, 2")
e("s_mul_i32 s36, s3, 28"); e("s_add_u32 s36, s36, s38"); e("s_cmp_ge_u32 s36, 112"); e("s_cselect_b32 s36, 0, s36"); e("s_lshl_b32 s36, s36, 11")
e(f"s_mul_i32 s44, s78, {112*2048}"); e("s_add_u32 s80, s44, s36"); e(f"s_add_u32 s45, s44, {112*2048}")
e(f"s_mul_i32 s46, s79, {112*2048}"); e(f"s_add_u32 s46, s46, {WD_OFF}"); e("s_add_u32 s81, s46, s36"); e(f"s_add_u32 s47, s46, {112*2048}")
stamp(1)
e(f"s_waitcnt vmcnt({14 if PF == 1 else 12})")
e("s_and_b32 s68, s68, 0xfffe"); e("s_or_b32 s68, s68, 1"); e("s_mov_b32 s69, 0"); e("v_lshlrev_b32 v31, 8, v0")
e("v_mov_b32 v248, 0"); e("s_mov_b64 exec, s[68:69]"); e("buffer_store_dword v248, v31, s[20:23], s77 offen sc1"); e("s_mov_b64 exec, -1")
e("s_cmp_ge_u32 s2, 224"); e("s_cbranch_scc1 SJ_GATE")
e("s_mov_b32 s36, 0x05040100"); e("s_mov_b32 s38, 0x07060302")
for i in range(4): e(f"v_perm_b32 v{16+i}, v{209+2*i}, v{208+2*i}, s36"); e(f"v_perm_b32 v{20+i}, v{209+2*i}, v{208+2*i}, s38")
e("s_lshr_b32 s36, s2, 1"); e("s_lshl_b32 s36, s36, 11"); e("s_and_b32 s38, s2, 1"); e("s_lshl_b32 s38, s38, 9")
e("s_add_u32 s36, s36, s38"); e(f"s_add_u32 s36, s36, {WD_OFF}"); e(f"s_mov_b32 s38, {112*2048}")
for c in range(2):
    e(f"v_lshl_add_u32 v24, v253, 1, {c}")
    e("v_sub_u32 v25, 0x200, v24"); e("v_cmp_gt_u32 vcc, 0x100, v24"); e("v_and_b32 v25, 0xff, v25"); e("s_nop 0")
    e("v_cndmask_b32 v25, v25, v24, vcc")
    e("v_lshrrev_b32 v26, 5, v25"); e("v_mul_lo_u32 v26, v26, s38"); e("v_lshrrev_b32 v24, 8, v24"); e("v_lshl_add_u32 v26, v24, 10, v26")
    e("v_and_b32 v25, 31, v25"); e(f"v_lshl_add_u32 v{27+c}, v25, 4, v26")
    e(f"buffer_store_dwordx4 {vr(16+4*c,4)}, v{27+c}, s[20:23], s36 offen sc1")
lab("SJ_GATE")
e(GCMP); e("s_cbranch_scc0 SJ_DONE")
e("v_mov_b32 v208, 0"); e("v_mov_b32 v209, 0")
for i in range(16):
    e(f"v_lshlrev_b32 v210, 16, v{216+i}"); e(f"v_lshlrev_b32 v211, 16, v{232+i}")
    e(f"v_and_b32 v{216+i}, 0xffff0000, v{216+i}"); e(f"v_and_b32 v{232+i}, 0xffff0000, v{232+i}")
    e("v_fmac_f32 v208, v210, v211"); e("v_add_f32 v209, v209, v210")
    e(f"v_fmac_f32 v208, v{216+i}, v{232+i}"); e(f"v_sub_f32 v209, v209, v{216+i}")
for sh in (8, 4, 2, 1):
    e("s_nop 1")
    e(f"v_add_f32_dpp v208, v208, v208 row_ror:{sh} row_mask:0xf bank_mask:0xf")
    e(f"v_add_f32_dpp v209, v209, v209 row_ror:{sh} row_mask:0xf bank_mask:0xf")
e("v_mul_f32 v208, 0xbfb8aa3b, v208"); e("v_exp_f32 v208, v208"); e("v_sub_u32 v210, 0x800, v251"); e("v_add_f32 v208, 1.0, v208")
e("v_rcp_f32 v208, v208"); e("v_cmp_gt_u32 vcc, 0x400, v251"); e("v_and_b32 v210, 0x3ff, v210"); e("s_nop 0")
e("v_cndmask_b32 v210, v210, v251, vcc")
e("v_lshrrev_b32 v211, 6, v210"); e("v_lshlrev_b32 v211, 7, v211"); e("v_and_b32 v212, 1, v210"); e("v_lshl_add_u32 v211, v212, 6, v211")
e("v_bfe_u32 v212, v210, 1, 5"); e("v_add_u32 v211, v211, v212"); e("v_lshrrev_b32 v212, 10, v251"); e("v_lshl_add_u32 v211, v212, 5, v211")
e("v_lshlrev_b32 v211, 2, v211"); e(f"s_mov_b32 s36, {GT_OFF}")
e("s_mov_b32 exec_lo, 0x10001"); e("s_mov_b32 exec_hi, 0x10001")
e("buffer_store_dword v208, v211, s[20:23], s36 offen sc1"); e("s_mov_b64 exec, -1")
for g in range(4): e(f"v_readlane_b32 s{64+g}, v209, {16*g}")
e("s_nop 3")
e("v_mov_b32 v210, s66"); e("v_add_f32 v210, s65, v210")
e("s_cmp_eq_u32 s76, 0"); e("s_cselect_b32 s65, 0, s65"); e("s_cselect_b32 s66, 0, s66")
e("v_mov_b32 v211, s64"); e("v_add_f32 v211, s65, v211"); e("v_mov_b32 v212, s67"); e("v_add_f32 v212, s66, v212")
e("v_add_f32 v213, v211, v212"); e("v_sub_f32 v214, v211, v212"); e("v_cvt_pk_bf16_f32 v213, v213, v214")
e("s_lshr_b32 s36, s76, 4"); e("s_lshl_b32 s36, s36, 11"); e("s_and_b32 s38, s76, 8"); e("s_lshl_b32 s38, s38, 6")
e("s_add_u32 s36, s36, s38"); e("s_and_b32 s38, s76, 7"); e("s_lshl_b32 s38, s38, 1"); e("s_add_u32 s36, s36, s38")
e(f"s_add_u32 s36, s36, {EO_OFF + 1024}"); e(f"s_add_u32 s38, s36, {8*33*2048}")
e("s_mov_b64 exec, 1")
e("buffer_store_short v213, v248, s[20:23], s36 offen sc1"); e("buffer_store_short_d16_hi v213, v248, s[20:23], s38 offen sc1")
e("s_mov_b64 exec, -1")
e("s_cmp_eq_u32 s76, 0"); e("s_cbranch_scc0 SJ_DONE")
e("v_cvt_pk_bf16_f32 v216, v210, 0"); e("v_cmp_eq_u32 vcc, 0, v0"); e("v_mov_b32 v217, 0"); e("v_mov_b32 v218, 0"); e("v_mov_b32 v219, 0")
e("v_cndmask_b32 v216, 0, v216, vcc")
e(f"s_mov_b32 s36, {EO_OFF + 32*2048 + 1024}"); e(f"s_mov_b32 s38, {EO_OFF + (8*33+32)*2048 + 1024}")
e("s_mov_b32 exec_lo, 1"); e("s_mov_b32 exec_hi, 1")
e("buffer_store_dwordx4 v[216:219], v1, s[20:23], s36 offen sc1"); e("buffer_store_dwordx4 v[216:219], v1, s[20:23], s38 offen sc1")
e("s_mov_b64 exec, -1")
lab("SJ_DONE")
e("v_and_b32 v14, 3, v0"); e("v_lshlrev_b32 v14, 6, v14")
e("v_and_b32 v16, 31, v0"); e("v_lshlrev_b32 v16, 2, v16"); e("v_lshrrev_b32 v17, 5, v0"); e("v_lshlrev_b32 v17, 4, v17")
e("s_lshl_b32 s82, s6, 9"); e(f"s_add_u32 s82, s82, {GT_OFF}"); e("s_lshl_b32 s83, s78, 8"); e(f"s_add_u32 s83, s83, {GT_OFF}")
e("s_lshr_b32 s36, s78, 1"); e("s_lshl_b32 s36, s36, 6"); e("s_and_b32 s38, s78, 1"); e("s_add_u32 s70, s36, s38")
e("v_and_b32 v208, 31, v0"); e("v_lshl_add_u32 v208, v208, 1, s70"); e("v_cmp_eq_u32 s[64:65], 0, v208")
e("v_lshrrev_b32 v209, 5, v0"); e("s_lshl_b32 s36, s3, 7"); e("v_lshl_add_u32 v209, v209, 3, s36"); e("v_mul_lo_u32 v209, v209, v208")
CSA = 152
def cslist():
    r = ["v_cvt_f32_u32 v209, v209", "v_cvt_f32_u32 v208, v208", "v_mul_f32 v209, 0x3a000000, v209", "v_mul_f32 v208, 0x3a000000, v208",
         "v_mul_f32 v210, 0x41100000, v208", "v_mov_b32 v211, 0xbf803f80"]
    for k in range(9):
        r.append("v_fract_f32 v209, v209")
        for i in range(4):
            r += ["v_add_f32 v212, v209, v208", "v_cos_f32 v213, v209", "v_sin_f32 v214, -v209", f"v_add_f32 v209, v212, v{208 if i < 3 else 210}",
                  "v_cos_f32 v215, v212", "v_sin_f32 v216, -v212", "v_cvt_pk_bf16_f32 v217, v213, v215", "s_nop 0", "v_cvt_pk_bf16_f32 v218, v214, v216",
                  f"v_accvgpr_write_b32 a{CSA+8*k+i}, v217", "v_cndmask_b32 v218, v218, v211, s[64:65]", f"v_accvgpr_write_b32 a{CSA+8*k+4+i}, v218"]
    return [x for x in r if x != "s_nop 0"]
def wdreg(s_): return ar(8*s_, 8) if s_ < 19 else ar(224 + 8*(s_-19), 8) if s_ < 23 else vr(168 + 8*(s_-23), 8)
def sub(r, f):
    k, lo = r[0], int(r[2:r.index(':')]); return f"{k}[{lo+4*f}:{lo+4*f+3}]"
ST0 = int(OPT.get('st0', 1)); assert not PF
CSN = int(OPT.get('csn', 2))
e("s_cmp_ge_u32 s7, 14"); e("s_cbranch_scc1 P1_DFT")
ACC, FA, FB, GV = 32, 160, 184, 224
def mainloop(dft):
    T = "D" if dft else "F"
    def reads(st, ks, F):
        buf = st % 3; r = []
        for u in range(2):
            for rh in range(2):
                off = buf*32768 + u*16384 + ks*4096 + rh*1024; a = 12
                if off >= 65536: off -= 65536; a = 13
                r.append(f"ds_read_b64_tr_b16 {vr(F+16+4*u+2*rh,2)}, v{a} offset:{off}")
        for f in range(4): r.append(f"ds_read_b128 {vr(F+4*f,4)}, v{8+ks} offset:{XB + buf*16384 + f*4096}")
        return r
    def kstep(F, first, rd, extra):
        for i in range(8):
            c = vr(ACC+16*i, 16); x, w = vr(F+4*(i>>1), 4), vr(F+16+4*(i&1), 4)
            e(f"v_mfma_f32_32x32x16_bf16 {c}, {x if dft else w}, {w if dft else x}, {'0' if first else c}")
            if rd: e(rd[i])
            for _ in range(CSN):
                if cs: e(cs.pop(0))
            if extra and i & 1:
                for s in extra.pop(0): e(s)
                MQ.append('d')
            elif wq and (i & 1 or (i in ESL and dmaleft[0])):
                MQ.append('g' if NWD - len(wq) < 12 else 'w')
                for s in wq.pop(0): e(s)
    wd = []; cs = cslist(); wq = []; dmaleft = [True]
    global MQ
    MQ = []
    def after(n):
        idx = [i for i, t in enumerate(MQ) if t == 'd']; return len(MQ) - 1 - idx[n-1] if n else len(MQ)
    for s in range(28):
        for f in range(2): wd.append([f"buffer_load_dwordx4 {sub(wdreg(s),f)}, v1, s[20:23], s81 offen offset:{2048*(s&1)+1024*f} sc1"])
        if s & 1: wd[-1] += ["s_add_u32 s81, s81, 4096", "s_cmp_ge_u32 s81, s47", "s_cselect_b32 s81, s46, s81"]
    gl = [[f"buffer_load_dword v{20+f}, v16, s[20:23], s82 offen offset:{128*f} sc1"] for f in range(4)]
    gl += [[f"buffer_load_dwordx4 {vr(GV+4*q,4)}, v17, s[20:23], s83 offen offset:{32*q} sc1"] for q in range(8)]
    wd = gl + wd
    global WDREST
    WDREST = wd[NWD:]
    e("s_barrier"); stamp(2)
    for r in reads(0, 0, FA): e(r)
    extra = dma_list(2)
    if PF == 2: extra[-1] += pfl(T)
    for st in range(8):
        e("s_waitcnt lgkmcnt(0)"); kstep(FA, st == 0, reads(st, 1, FB), extra)
        e("s_waitcnt lgkmcnt(0)"); kstep(FB, False, reads(st, 2, FA), extra)
        e("s_waitcnt lgkmcnt(0)"); kstep(FA, False, reads(st, 3, FB), extra)
        if st < 7:
            assert not extra
            if ST0 and st == 0:
                e("s_cmp_ge_u32 s2, 224"); e(f"s_cbranch_scc1 W13{T}"); e(GCMP); e(f"s_cbranch_scc1 W18{T}")
                e("s_waitcnt vmcnt(15)"); e(f"s_branch W18{T}"); lab(f"W13{T}"); e("s_waitcnt vmcnt(13)"); lab(f"W18{T}")
                e("s_waitcnt vmcnt(18) lgkmcnt(0)"); e("s_barrier")
            else:
                e(f"s_waitcnt vmcnt({min(63, after(12*st))}) lgkmcnt(0)"); e("s_barrier")
            if st in (0, 2, 4, 5, 6): stamp({0:1, 2:4, 4:5, 5:6, 6:7}[st], 1)
            if st == ST0:
                e("s_cmp_eq_u32 s3, 0"); e(f"s_cbranch_scc0 NOARR{T}"); e("s_and_b32 s36, s2, 3"); e("s_lshl_b32 s36, s36, 6")
                e("v_mov_b32 v15, 1"); e("s_mov_b64 exec, 1"); e("buffer_atomic_add v15, v248, s[28:31], s36 offen sc1"); e("s_mov_b64 exec, -1")
                lab(f"NOARR{T}")
            if st == CST-1: e("buffer_load_dword v15, v14, s[28:31], 0 offen sc1")
            if st == 5: dmaleft[0] = False
            if st == CST:
                e("s_mov_b32 s36, 0"); lab(f"C0CHK{T}"); e("v_cmp_gt_u32 vcc, 64, v15"); e(f"s_cbranch_vccz C0OK{T}")
                e("s_sleep 2"); e("buffer_load_dword v15, v14, s[28:31], 0 offen sc1"); e("s_add_u32 s36, s36, 1"); e("s_waitcnt vmcnt(0)")
                e("s_cmp_lt_u32 s36, 0x40000"); e(f"s_cbranch_scc1 C0CHK{T}"); lab(f"C0OK{T}"); wq += wd[:NWD]
            if st + 3 <= 7: extra = dma_list(st % 3)
            kstep(FB, False, reads(st+1, 0, FA), extra)
        else:
            e("s_waitcnt lgkmcnt(0)"); kstep(FB, False, None, extra)
    print("left after loop", len(wq))
    for g in wq:
        MQ.append('w')
        for s in g: e(s)
    assert not cs
    stamp(3)
mainloop(False)
e("s_mul_i32 s36, s6, 224"); e("s_lshl_b32 s38, s7, 3"); e("s_add_u32 s36, s36, s38"); e("s_lshl_b32 s38, s3, 1"); e("s_add_u32 s36, s36, s38")
e("s_lshl_b32 s36, s36, 11"); e(f"s_add_u32 s38, s36, {112*2048}")
e(f"s_waitcnt vmcnt({min(63, len(MQ) - 1 - max(i for i, t in enumerate(MQ) if t == 'g'))})")
for f in range(4): e(f"v_sub_f32 v{20+f}, 1.0, v{20+f}")
for f in range(4): e(f"v_rcp_f32 v{20+f}, v{20+f}")
e("s_mov_b32 s64, 0xbfb8aa3b"); e("s_mov_b32 s65, 0xbfb8aa3b")
for f in range(4): e(f"v_min_f32 v{24+2*f}, 0x71800000, v{20+f}"); e(f"v_min_f32 v{25+2*f}, 0x71800000, v{20+f}")
for f in range(4):
    g = ACC + 32*f; u = g + 16
    for h in range(2):
        P = [2*i for i in range(4)]
        for i in P: e(f"v_pk_mul_f32 {vr(FA+i,2)}, {vr(g+8*h+i,2)}, s[64:65]")
        for i in range(8): e(f"v_exp_f32 v{FA+i}, v{FA+i}")
        for i in P: e(f"v_pk_mul_f32 {vr(g+8*h+i,2)}, {vr(g+8*h+i,2)}, {vr(u+8*h+i,2)}")
        for i in P: e(f"v_pk_fma_f32 {vr(FA+i,2)}, {vr(FA+i,2)}, {vr(24+2*f,2)}, {vr(24+2*f,2)}")
        for i in range(8): e(f"v_rcp_f32 v{FA+i}, v{FA+i}")
        for i in P: e(f"v_pk_mul_f32 {vr(g+8*h+i,2)}, {vr(g+8*h+i,2)}, {vr(FA+i,2)}")
        d = u + 8*h
        for i in range(4): e(f"v_cvt_pk_bf16_f32 v{d+i}, v{g+8*h+2*i}, v{g+8*h+2*i+1}")
        e(f"buffer_store_dwordx4 {vr(d,4)}, v1, s[20:23], s{38 if f >> 1 else 36} offen offset:{2048*h + 1024*(f&1)} sc1")
lab("P1_DONE")
for g in WDREST[:NW2]:
    for x in g: e(x)
e(f"s_waitcnt vmcnt({len(WDREST[:NW2])})"); e("s_barrier")
e("v_mov_b32 v11, 1"); e("v_lshlrev_b32 v12, 8, v0"); e("s_cmp_eq_u32 s3, 0"); e("s_cselect_b64 exec, s[68:69], 0"); e("s_cbranch_execz NOFLAG")
e("buffer_store_dword v11, v12, s[20:23], s77 offen sc1")
lab("NOFLAG"); e("s_mov_b64 exec, -1"); stamp(4)
NW3 = int(OPT.get('nw3', 99))
for g in WDREST[NW2:NW2+NW3]:
    for x in g: e(x)
WR = WDREST[NW2+NW3:]
e("v_min_u32 v11, 45, v0"); e("v_lshlrev_b32 v11, 2, v11"); e("s_lshr_b32 s38, s78, 1"); e("s_lshl_b32 s38, s38, 8")
e(f"s_add_u32 s38, s38, {FL_OFF}"); e("s_mov_b32 s36, 0")
e("s_and_b32 s82, s78, 1"); e("s_lshl_b32 s82, s82, 3"); e("s_add_u32 s82, s82, s79"); e("s_mul_i32 s82, s82, 33")
e("s_lshl_b32 s39, s3, 3"); e("s_add_u32 s82, s82, s39"); e("s_lshl_b32 s82, s82, 11"); e(f"s_add_u32 s82, s82, {EO_OFF}")
e("s_cmp_eq_u32 s3, 3"); e("s_cselect_b32 s39, 0, 0x40000000")
e("s_cmp_eq_u32 s3, 0"); e("s_cbranch_scc0 POLLOK")
lab("POLL"); e("buffer_load_dword v12, v11, s[20:23], s38 offen sc1"); e("s_add_u32 s36, s36, 1"); e("s_waitcnt vmcnt(0)")
e("v_cmp_ne_u32 vcc, 1, v12"); e("s_cbranch_vccz POLLOK"); e(f"s_sleep {OPT.get('slp', 4)}"); e("s_cmp_lt_u32 s36, 0x40000"); e("s_cbranch_scc1 POLL")
lab("POLLOK"); e("s_barrier"); stamp(5)
Q = []
hreg = {}
def ld(tag, dst, sreg, off):
    e(f"buffer_load_dwordx4 {dst}, v1, s[20:23], s{sreg} offen offset:{off} sc1"); Q.append(tag)
nh = [0]
def ldh(kind, base):
    s = nh[0]; nh[0] += 1; hreg[s] = (kind, base)
    for f in range(2): ld(('h', s), (ar if kind == 'a' else vr)(base+4*f, 4), 80, 2048*(s&1)+1024*f)
    if s & 1: e("s_add_u32 s80, s80, 4096"); e("s_cmp_ge_u32 s80, s45"); e("s_cselect_b32 s80, s44, s80")
def wait(tag):
    last = max(i for i, t in enumerate(Q) if t == tag or t == ('w', tag[1]) and tag[0] == 'h'); e(f"s_waitcnt vmcnt({min(63, len(Q)-1-last)})")
def ldw(n):
    for _ in range(n):
        if WR:
            Q.append(('w', 28 - (len(WR)+1)//2))
            for x in WR.pop(0): e(x)
for k in range(9):
    if k == 8: e("s_add_u32 s82, s82, s39")
    for f in range(2): ld(('e', k), vr(96+8*k+4*f, 4), 82, 2048*(k&1)+1024*f)
    if k & 1: e("s_add_u32 s82, s82, 4096")
for b in (208, 216, 16, 24): ldh('v', b)
A2 = 32
for k in range(9):
    wait(('e', k))
    for i in range(4):
        c = vr(A2+16*i, 16); e(f"v_mfma_f32_32x32x16_bf16 {c}, {ar(CSA+8*k+4*(i>>1),4)}, {vr(96+8*k+4*(i&1),4)}, {'0' if k == 0 else c}")
    ldh('a', CSA+8*k)
    if k == 8: ldh('v', 160)
    ldw(int(OPT.get('wn', 2)))
e("s_cmp_eq_u32 s79, 0"); e("s_cselect_b32 s24, 1, 0"); e("s_mov_b32 s25, s24")
e("s_cmp_eq_u32 s78, 0"); e("s_cselect_b32 s26, -1, 0"); e("s_mov_b32 s27, 0")
CB = []; e0 = e
def e(s): CB.append(s)
PP, PQ, QP, QQ = A2, A2+16, A2+32, A2+48
for i in range(16):
    e(f"v_sub_f32 v4, v{PP+i}, v{QQ+i}"); e(f"v_add_f32 v5, v{PP+i}, v{QQ+i}")
    e(f"v_cndmask_b32 v6, v4, v{PP+i}, s[24:25]"); e(f"v_cndmask_b32 v7, v5, v{PQ+i}, s[24:25]")
    e(f"v_cndmask_b32 v8, v5, v{PP+i}, s[24:25]"); e(f"v_cndmask_b32 v9, v4, v{PQ+i}, s[24:25]")
    if i == 0:
        e(f"v_cndmask_b32 v4, v{PP}, v{PQ}, s[24:25]"); e(f"v_cndmask_b32 v5, v{QP}, v{QQ}, s[24:25]")
        e(f"v_cndmask_b32 v6, v6, v{PP}, s[26:27]"); e(f"v_cndmask_b32 v7, v7, v4, s[26:27]")
        e(f"v_cndmask_b32 v8, v8, v{QP}, s[26:27]"); e(f"v_cndmask_b32 v9, v9, v5, s[26:27]")
    for q in range(4): e(f"v_mul_f32 v{A2+16*q+i}, v{GV+16*(q>>1)+i}, v{6+q}")
e = e0; B2 = 96; gvfree = False
for s in range(28):
    wait(('h', s)); kind, base = hreg[s]
    for i in range(4):
        c = vr(B2+16*i, 16); e(f"v_mfma_f32_32x32x16_bf16 {c}, {(ar if kind == 'a' else vr)(base+4*(i>>1),4)}, {sub(wdreg(s),i&1)}, {c if s else 0}")
        if s == 0 and i == 3: e("s_nop 7")
        for _ in range(int(OPT.get('cbn', 3))):
            if s and CB: e(CB.pop(0))
    if nh[0] < 28: ldh(kind, base)
    ldw(2); assert 28 - (len(WR)+1)//2 > s + 1 or not WR
assert not CB
stamp(6)
srd(8, 60, 2048*1024)
e("s_lshl_b32 s12, s3, 12"); e("v_add_u32 v2, s12, v1")
e("v_and_b32 v3, 31, v0"); e("s_lshl_b32 s12, s79, 5"); e("v_add_u32 v3, s12, v3")
e("v_sub_u32 v4, 0x200, v3"); e("v_mov_b32 v5, 0x100"); e("v_cndmask_b32 v4, v4, v5, s[24:25]")
e("s_and_b32 s12, s3, 1"); e("s_cselect_b64 s[28:29], -1, 0"); e("v_cndmask_b32 v3, v3, v4, s[28:29]")
e("v_lshrrev_b32 v4, 5, v0"); e("v_lshl_add_u32 v4, v4, 3, s70")
for qd in range(4):
    for q in range(8): e(f"v_pk_add_f32 {vr(A2+16*qd+2*q,2)}, {vr(A2+16*qd+2*q,2)}, {vr(B2+16*qd+2*q,2)}")
    for q in range(4): e(f"ds_write_b128 v2, {vr(A2+16*qd+4*q,4)} offset:{qd*16384+q*1024}")
e("s_lshl_b32 s12, s3, 14"); e("v_add_u32 v2, s12, v1")
e("v_sub_u32 v5, 0x800, v4"); e("s_movk_i32 s12, 0x800"); e("s_cmp_ge_u32 s3, 2"); e("s_cselect_b64 s[28:29], -1, 0")
e("s_cselect_b32 s12, 0xfffff800, s12"); e("s_mul_i32 s13, s12, 5"); e("s_and_b64 s[26:27], s[26:27], s[28:29]")
e("v_cndmask_b32 v4, v4, v5, s[28:29]"); e("v_lshlrev_b32 v3, 1, v3"); e("v_lshl_add_u32 v4, v4, 10, v3")
e("v_add_u32 v5, 0x100000, v3"); e("v_cndmask_b32 v5, v4, v5, s[26:27]")
for i in range(1, 16): e(f"v_add_u32 v{6+i}, s{13 if (i & 3) == 0 else 12}, v{4 if i == 1 else 5+i}")
e("s_waitcnt lgkmcnt(0)"); e("s_barrier")
for q in range(4):
    for w in range(4): e(f"ds_read_b128 {vr(A2+16*w+4*q,4)}, v2 offset:{w*4096+q*1024}")
for q in range(4):
    e(f"s_waitcnt lgkmcnt({12-4*q})")
    for i in range(4*q, 4*q+4): e(f"v_add_f32 v{A2+i}, v{A2+i}, v{A2+16+i}"); e(f"v_add_f32 v{A2+32+i}, v{A2+32+i}, v{A2+48+i}")
    for i in range(4*q, 4*q+4): e(f"v_add_f32 v{A2+i}, v{A2+i}, v{A2+32+i}")
    for i in range(2*q, 2*q+2): e(f"v_cvt_pk_bf16_f32 v{96+i}, v{A2+2*i}, v{A2+2*i+1}")
    for i in range(4*q, 4*q+4): e(f"buffer_store_short{'_d16_hi' if i & 1 else ''} v{96+i//2}, v{5 if i == 0 else 6+i}, s[8:11], 0 offen {OPT.get('ost', '').replace('+', ' ')}")
if TS:
  if 1:
    e("s_waitcnt vmcnt(0)"); stamp(7); e("s_waitcnt lgkmcnt(0)"); e("s_mov_b64 exec, 1")
    for i in range(8): e(f"v_mov_b32 v{8+i}, s{84+2*i}")
  if TS == 2:
    srd(28, 62, 256); e("v_mov_b32 v16, 0"); e("v_not_b32 v17, v8"); e("s_cmp_eq_u32 s3, 0"); e("s_cbranch_scc0 K_END")
    e("buffer_atomic_umax v17, v16, s[28:31], 0 offen offset:4 sc1")
    for i in range(8): e(f"buffer_atomic_umax v{8+i}, v16, s[28:31], 0 offen offset:{8+4*i} sc1")
    for i in (2, 3, 5, 7): e(f"v_not_b32 v{8+i}, v{8+i}")
    for n, i in enumerate((2, 3, 5, 7)): e(f"buffer_atomic_umax v{8+i}, v16, s[28:31], 0 offen offset:{40+4*n} sc1")
  if TS == 1:
    e("v_mov_b32 v16, 0"); e("s_lshl_b32 s36, s2, 3"); e("s_add_u32 s36, s36, s3"); e("s_lshl_b32 s36, s36, 5"); e(f"s_add_u32 s36, s36, {TS_OFF}")
    e("buffer_store_dwordx4 v[8:11], v16, s[20:23], s36 offen"); e("buffer_store_dwordx4 v[12:15], v16, s[20:23], s36 offen offset:16")
lab("K_END")
e("s_endpgm")
lab("P1_DFT")
mainloop(True)
e("s_cmp_eq_u32 s7, 14"); e("s_cselect_b32 s64, 1.0, -1.0")
e("s_mul_i32 s36, s3, 33"); e("s_lshl_b32 s36, s36, 11"); e("s_sub_u32 s38, s7, 14"); e("s_lshl_b32 s38, s38, 10")
e("s_add_u32 s36, s36, s38"); e(f"s_add_u32 s36, s36, {EO_OFF}")
e("s_lshl_b32 s38, s7, 2"); e("s_add_u32 s38, s38, s3"); e("s_cmp_eq_u32 s38, 60"); e("s_cselect_b32 s66, -2, -1"); e("s_mov_b32 s67, s66")
e("v_mov_b32 v25, 0"); e("v_mov_b32 v26, 0"); e("v_mov_b32 v27, 0"); e("v_cmp_gt_u32 vcc, 32, v0"); e("s_nop 7")
for u in range(2):
    R = [ACC + 32*f + 16*u for f in range(4)]
    e("s_cmp_eq_u32 s6, 0"); e(f"s_cbranch_scc0 DGEN{u}")
    e(f"v_fma_f32 v24, v{R[1]}, s64, v{R[2]}"); e("v_cvt_pk_bf16_f32 v24, v24, 0")
    e("v_cndmask_b32 v24, 0, v24, vcc"); e(f"v_cndmask_b32 v{R[1]}, v{R[1]}, v25, vcc"); e(f"v_cndmask_b32 v{R[2]}, v{R[2]}, v25, vcc")
    e(f"s_add_u32 s38, s36, {32*2048}"); e(f"s_add_u32 s39, s36, {(8*33+32)*2048}")
    if u == 0: e("s_mov_b64 exec, s[66:67]")
    e("buffer_store_dwordx4 v[24:27], v1, s[20:23], s38 offen sc1"); e("buffer_store_dwordx4 v[24:27], v1, s[20:23], s39 offen sc1")
    e("s_mov_b64 exec, -1")
    lab(f"DGEN{u}")
    e("s_lshl_b32 s38, s6, 12"); e("s_add_u32 s38, s36, s38"); e(f"s_add_u32 s39, s38, {8*33*2048}")
    for i in range(16): e(f"v_fma_f32 v{R[0]+i}, v{R[1]+i}, s64, v{R[0]+i}"); e(f"v_fma_f32 v{R[3]+i}, v{R[2]+i}, s64, v{R[3]+i}")
    for i in range(16): e(f"v_add_f32 v{R[1]+i}, v{R[0]+i}, v{R[3]+i}"); e(f"v_sub_f32 v{R[2]+i}, v{R[0]+i}, v{R[3]+i}")
    for p in range(2):
        for i in range(8): e(f"v_cvt_pk_bf16_f32 v{R[0]+8*p+i}, v{R[1+p]+2*i}, v{R[1+p]+2*i+1}")
    if u == 0: e("s_mov_b64 exec, s[66:67]")
    for p in range(2):
        for h in range(2): e(f"buffer_store_dwordx4 {vr(R[0]+8*p+4*h,4)}, v1, s[20:23], s{38+p} offen offset:{2048*h} sc1")
    e("s_mov_b64 exec, -1"); e(f"s_add_u32 s36, s36, {4*33*2048}")
e("s_branch P1_DONE"); lab("CODE_END")
L += ['.section .rodata,"a"', ".p2align 6", f".amdhsa_kernel {KN}", "  .amdhsa_next_free_vgpr 512", "  .amdhsa_next_free_sgpr 102",
      "  .amdhsa_accum_offset 256", "  .amdhsa_group_segment_fixed_size 0", "  .amdhsa_kernarg_size 104",
      "  .amdhsa_user_sgpr_count 2", "  .amdhsa_user_sgpr_kernarg_segment_ptr 1", "  .amdhsa_system_sgpr_workgroup_id_x 1", ".end_amdhsa_kernel"]
open(sys.argv[1], 'w').write("\n".join(L) + "\n")
```

```python
import sys
OPT = dict(a.split('=') for a in sys.argv[2:])
NAME = "gated_mix__spectral_fnet__swiglu_ffn__prompt"
KN = NAME + "_kernel"
L = []
NCS = int(OPT.get('ncs', 2))
NW2 = int(OPT.get('nw2', 0))
NWD = int(OPT.get('nwd', 36)); CST = int(OPT.get('cst', 5)); ESL = {0:(), 2:(2,6), 3:(0,2,6), 4:(0,2,4,6)}[int(OPT.get('wr', 3))]
ROT = int(OPT.get('rot', 0))
GX = int(OPT.get('gx', 1)); GCMP = 's_cmp_lt_u32 s4, 4' if GX else 's_cmp_lt_u32 s3, 2'
def e(s): L.append("    " + s)
def lab(s): L.append(s + ":")
H_OFF = 0
WD_OFF = H_OFF + 32*112*2048
EO_OFF = WD_OFF + 8*112*2048
GT_OFF = EO_OFF + 16*33*2048
FL_OFF = GT_OFF + 8192
TS = int(OPT.get('ts', 0)); TS_OFF = 12427264
WS_SIZE = TS_OFF + 65536 if TS == 1 else FL_OFF + 4096
def srd(d, p, n):
    e(f"s_mov_b32 s{d}, s{p}"); e(f"s_mov_b32 s{d+1}, s{p+1}"); e(f"s_mov_b32 s{d+2}, {n}"); e(f"s_mov_b32 s{d+3}, 0x00020000")
def vr(a, n): return f"v[{a}:{a+n-1}]"
def ar(a, n): return f"a[{a}:{a+n-1}]"
def stamp(i, p=0):
    if OPT.get('pst') and i in (1, 4, 5, 6, 7) and not p: return
    if TS and (OPT.get('pst') or not p): e(f"s_memrealtime s[{84+2*i}:{85+2*i}]")
for l in open('cdna_kernels/' + NAME + '.s.ref').read().split('\n'):
    if l.startswith('; @launch'): break
    L.append(l)
L.append(f"; @launch {'kernel=' + KN + ' ' if TS == 1 else ''}grid=(256,1,1) block=(256,1,1) lds=147456")
L += ['.amdgcn_target "amdgcn-amd-amdhsa--gfx950"', ".text", f".globl {KN}", ".p2align 8", f".type {KN},@function"]
lab(KN)
e("s_cmp_ge_u32 s2, 256"); e("s_cbranch_scc1 K_END"); stamp(0)
e("s_load_dwordx2 s[40:41], s[0:1], 0")
e("s_load_dwordx4 s[44:47], s[0:1], 24")
e("s_load_dwordx8 s[52:59], s[0:1], 48")
e("s_load_dwordx4 s[60:63], s[0:1], 80")
e("s_load_dwordx2 s[42:43], s[0:1], 96")
if int(OPT.get('cpf', 1)):
    e("s_getpc_b64 s[36:37]"); lab("PCREF")
    e("v_lshlrev_b32 v2, 7, v0"); e("v_min_u32 v2, CODE_END-PCREF-4, v2"); e("v_mov_b32 v3, s37")
    e("v_add_co_u32 v2, vcc, s36, v2"); e("v_addc_co_u32 v3, vcc, 0, v3, vcc"); e("global_load_dword v255, v[2:3], off")
e("v_lshrrev_b32 v1, 6, v0"); e("v_and_b32 v0, 63, v0"); e("v_readfirstlane_b32 s3, v1")
e("s_and_b32 s4, s2, 7"); e("s_lshr_b32 s5, s2, 3")
MAP = int(OPT.get('map', 0))
e("s_and_b32 s6, s4, 1"); e("s_lshl_b32 s6, s6, 3"); e("s_lshr_b32 s7, s5, 2" if MAP else "s_and_b32 s7, s5, 7"); e("s_add_u32 s6, s6, s7")
e("s_lshr_b32 s7, s4, 1"); e("s_lshl_b32 s7, s7, 2"); e("s_and_b32 s36, s5, 3" if MAP else "s_lshr_b32 s36, s5, 3"); e("s_add_u32 s7, s7, s36")
if MAP == 2: e("s_lshl_b32 s6, s4, 1"); e("s_and_b32 s7, s5, 1"); e("s_add_u32 s6, s6, s7"); e("s_lshr_b32 s7, s5, 1")
e("s_lshl_b32 s64, s6, 6"); e("s_lshr_b32 s36, s3, 1"); e("s_add_u32 s64, s64, s36"); e("s_lshl_b32 s37, s6, 5")
e("s_lshl_b32 s66, s36, 10"); e("s_add_u32 s38, s3, 1"); e("s_lshr_b32 s38, s38, 1")
e("s_cmp_ge_u32 s7, 14"); e("s_cselect_b64 s[68:69], -1, 0"); e("s_cselect_b32 s64, s37, s64"); e("s_cselect_b32 s66, s66, 0")
e("s_cselect_b32 s38, s38, s3"); e("s_movk_i32 s67, 0x400"); e("s_cselect_b32 s67, 0x200, s67")
e("s_movk_i32 s37, 3584"); e("s_cselect_b32 s37, 0x400, s37"); e("s_cselect_b32 s39, 0x100, 0")
e("s_lshl_b32 s70, s7, 8"); e("s_cmp_ge_u32 s7, 14"); e("s_cselect_b32 s70, 0, s70")
e("s_and_b32 s38, s38, 1"); e("s_cselect_b32 s65, -1, 1"); e("s_cselect_b32 s67, s67, 0")
e("v_lshrrev_b32 v8, 3, v0"); e("v_and_b32 v9, 3, v8"); e("v_and_b32 v10, 4, v8"); e("v_lshl_add_u32 v9, v10, 1, v9")
e("v_lshlrev_b32 v8, 1, v8"); e("v_cndmask_b32 v8, v8, v9, s[68:69]"); e("v_add_u32 v8, s64, v8")
e("v_lshrrev_b32 v10, 4, v0"); e("v_xor_b32 v11, v10, v0"); e("v_and_b32 v11, 7, v11"); e("v_lshlrev_b32 v11, 4, v11")
e("v_cmp_eq_u32 vcc, 0, v8"); e("v_mov_b32 v12, s67"); e("v_xor_b32 v13, 64, v11")
for q in range(4):
    if q == 0: e("v_cndmask_b32 v9, v8, v12, vcc")
    else:
        e(f"s_cmp_ge_u32 s7, 14"); e(f"s_cselect_b32 s36, {(4,16,20)[q-1]}, {16*q}"); e("v_add_u32 v9, s36, v8")
    e("v_mul_lo_u32 v9, v9, s65"); e("v_add_u32 v9, s66, v9"); e("v_and_b32 v9, 0x7ff, v9")
    e(f"v_lshl_add_u32 v{2+q}, v9, 10, v{13 if q & 1 else 11}")
e("v_lshlrev_b32 v9, 2, v10"); e("v_xor_b32 v9, v9, v0"); e("v_and_b32 v9, 15, v9")
e("s_lshl_b32 s36, s3, 4"); e("v_add_u32 v10, s36, v10"); e("v_mul_lo_u32 v10, v10, s37")
e("v_lshl_add_u32 v6, v9, 4, v10"); e("v_add_u32 v6, s70, v6"); e("v_add_u32 v7, s39, v6")
e("s_lshl_b32 s71, s37, 2"); e("s_mul_i32 s72, s37, 52"); e("s_lshl_b32 s73, s3, 12")
e("s_lshl_b32 s74, s7, 1"); e("s_add_u32 s74, s74, s6"); e(f"s_and_b32 s74, s74, {ROT & 7}")
e("s_mul_i32 s75, s74, s37"); e("s_lshl_b32 s75, s75, 6"); e("s_lshl_b32 s74, s74, 7")
e("s_lshl_b32 s37, s37, 9")
e("s_waitcnt lgkmcnt(0)")
srd(8, 40, 2048*1024)
e("s_cmp_eq_u32 s7, 14"); e("s_cselect_b32 s50, s44, s46"); e("s_cselect_b32 s51, s45, s47")
e("s_cmp_ge_u32 s7, 14"); e("s_cselect_b32 s48, s50, s52"); e("s_cselect_b32 s49, s51, s53"); e("s_cselect_b32 s50, s50, s54"); e("s_cselect_b32 s51, s51, s55")
srd(12, 48, "s37"); srd(16, 50, "s37")
if OPT.get('pf', '0') == '1':
    e("s_cmp_eq_u32 s3, 1"); e("s_cselect_b32 s24, s54, s52"); e("s_cselect_b32 s25, s55, s53")
    e("s_cmp_eq_u32 s3, 2"); e("s_cselect_b32 s24, s40, s24"); e("s_cselect_b32 s25, s41, s25"); e("s_movk_i32 s36, 7168"); e("s_cselect_b32 s36, 0x2000, s36")
    e("s_cmp_eq_u32 s3, 3"); e("s_cselect_b32 s24, s56, s24"); e("s_cselect_b32 s25, s57, s25")
    e("s_lshl_b32 s26, s36, 8"); e("s_mov_b32 s27, 0x00020000"); e("s_mul_i32 s36, s36, s2"); e("v_lshlrev_b32 v14, 7, v0")
    e("buffer_load_dword v15, v14, s[24:27], s36 offen")
XB, WB = 0, 49152
def dma_list(buf):
    r = []
    for q in range(4):
        r.append([f"s_add_u32 m0, s73, {XB + buf*16384 + q*1024}", "s_nop 0", f"buffer_load_dwordx4 v{2+q}, s[8:11], s74 offen lds"])
    for q in range(4):
        for u in range(2):
            r.append([f"s_add_u32 m0, s73, {WB + buf*32768 + u*16384 + q*1024}", "s_nop 0", f"buffer_load_dwordx4 v{6+u}, s[{12+4*u}:{15+4*u}], s75 offen lds"])
        r[-1].append(f"s_add_u32 s75, s75, s{71 if q < 3 else 72}")
    r[3] += ["s_add_u32 s74, s74, 128", "s_and_b32 s74, s74, 0x3ff"]
    r[-1] += ["s_cmp_ge_u32 s75, s37", "s_cselect_b32 s75, 0, s75"]
    return r
def dma(buf):
    for g in dma_list(buf):
        for i in g: e(i)
dma(0)
srd(20, 42, WS_SIZE); srd(24, 56, 1792*1024); srd(32, 58, 1024); srd(28, 62, 256)
e("s_lshl_b32 s36, s3, 6"); e("v_add_u32 v253, s36, v0"); e("v_lshlrev_b32 v252, 2, v253")
e("s_lshl_b32 s36, s2, 13"); e("s_add_u32 s38, s36, 4096")
for q in range(8): e(f"buffer_load_dword v{208+q}, v252, s[24:27], s{36 if q < 4 else 38} offen offset:{1024*(q&3)}")
e(GCMP); e("s_cbranch_scc0 SL_DONE")
if GX: e("s_lshl_b32 s36, s5, 2"); e("s_add_u32 s36, s36, s4"); e("s_lshl_b32 s36, s36, 2")
else: e("s_lshl_b32 s36, s2, 1")
e("s_add_u32 s76, s36, s3"); e("s_cmp_eq_u32 s76, 0"); e("s_cselect_b32 s36, 0x200, s76"); e("s_sub_u32 s36, 0, s36")
e("v_lshrrev_b32 v250, 4, v0"); e("v_add_u32 v251, 1, v250"); e("v_and_b32 v251, 2, v251"); e("v_cmp_ne_u32 vcc, 0, v251")
e("v_mov_b32 v251, s76"); e("v_mov_b32 v249, s36"); e("v_cndmask_b32 v251, v251, v249, vcc")
e("v_lshrrev_b32 v250, 1, v250"); e("v_lshl_add_u32 v251, v250, 10, v251"); e("v_and_b32 v251, 0x7ff, v251")
e("v_and_b32 v250, 15, v0"); e("v_lshlrev_b32 v250, 4, v250"); e("v_lshl_add_u32 v249, v251, 10, v250")
for q in range(4): e(f"buffer_load_dwordx4 {vr(216+4*q,4)}, v249, s[8:11], 0 offen offset:{256*q}")
for q in range(4): e(f"buffer_load_dwordx4 {vr(232+4*q,4)}, v250, s[32:35], 0 offen offset:{256*q}")
lab("SL_DONE")
dma(1)
PF = int(OPT.get('pf2', 0)); PFK = int(OPT.get('pfk', 128 if PF == 1 else 192))
PFL = []
if PF:
    e("s_and_b32 s36, s3, 1"); e("s_lshl_b32 s36, s36, 5"); e("v_lshrrev_b32 v29, 1, v0"); e("v_add_u32 v29, s36, v29")
    e("s_and_b32 s36, s6, 7"); e(f"s_add_u32 s36, s36, {PFK}"); e("v_lshl_add_u32 v29, v29, 3, s36"); e("s_lshr_b32 s36, s71, 2")
    e("v_mul_lo_u32 v29, v29, s36"); e("v_and_b32 v30, 1, v0"); e("v_lshl_add_u32 v29, v30, 7, v29"); e("v_add_u32 v29, s70, v29")
    e("s_bitcmp1_b32 s7, 0"); e("s_cselect_b64 vcc, -1, 0"); e("v_cndmask_b32 v30, v2, v3, vcc"); e("v_cndmask_b32 v31, v4, v5, vcc")
    e("s_bitcmp1_b32 s7, 1"); e("s_cselect_b64 vcc, -1, 0"); e("v_cndmask_b32 v30, v30, v31, vcc"); e("v_and_b32 v30, 0xfffffc00, v30")
    e("v_and_b32 v31, 7, v0"); e(f"v_max_u32 v31, {PFK//64}, v31"); e("v_lshl_add_u32 v30, v31, 7, v30")
    def pfl(T):
        return ["s_cmp_lt_u32 s3, 2", f"s_cbranch_scc0 PFU{T}", "buffer_load_dword v254, v29, s[12:15], 0 offen", f"s_branch PFE{T}", f"PFU{T}:",
                "buffer_load_dword v254, v29, s[16:19], s39 offen", f"PFE{T}:", "buffer_load_dword v255, v30, s[8:11], 0 offen"]
    if PF == 1:
        for i in pfl("P"): e(i)
e("v_lshlrev_b32 v1, 4, v0")
e("s_lshl_b32 s77, s6, 6"); e("s_add_u32 s77, s77, s7"); e("s_add_u32 s77, s77, 32"); e("s_lshl_b32 s36, s6, 1"); e("s_add_u32 s36, s36, s7"); e("s_sub_u32 s36, s36, 14")
e("s_cmp_ge_u32 s7, 14"); e("s_cselect_b32 s77, s36, s77"); e("s_lshl_b32 s77, s77, 2"); e(f"s_add_u32 s77, s77, {FL_OFF}")
e("v_and_b32 v14, 31, v0"); e("v_lshrrev_b32 v15, 5, v0"); e("v_bfe_u32 v9, v0, 1, 3"); e("v_xor_b32 v9, v15, v9")
e("v_lshlrev_b32 v9, 4, v9"); e("v_lshl_add_u32 v8, v14, 7, v9")
for k in range(1, 4): e(f"v_xor_b32 v{8+k}, {32*k}, v8")
e("v_bfe_u32 v14, v0, 2, 2"); e("v_lshl_add_u32 v15, v15, 3, v14"); e("v_lshlrev_b32 v12, 8, v15")
e("v_xor_b32 v14, s3, v14"); e("v_lshl_add_u32 v12, v14, 6, v12"); e("v_bfe_u32 v14, v0, 4, 1"); e("v_lshl_add_u32 v12, v14, 5, v12")
e("v_and_b32 v14, 3, v0"); e("v_bfrev_b32 v15, v14"); e("v_lshrrev_b32 v15, 30, v15"); e("v_cndmask_b32 v14, v15, v14, s[68:69]")
e("v_lshl_add_u32 v12, v14, 3, v12"); e(f"v_add_u32 v12, {WB}, v12"); e("v_add_u32 v13, 0x10000, v12")
e("s_lshr_b32 s78, s4, 1"); e("s_lshl_b32 s78, s78, 3"); e("s_and_b32 s36, s5, 3"); e("s_lshl_b32 s36, s36, 1"); e("s_add_u32 s78, s78, s36")
e("s_and_b32 s36, s4, 1"); e("s_add_u32 s78, s78, s36"); e("s_lshr_b32 s79, s5, 2")
if MAP == 2: e("s_lshl_b32 s78, s4, 2"); e("s_and_b32 s36, s5, 3"); e("s_add_u32 s78, s78, s36")
e("s_and_b32 s38, s78, 6"); e("s_add_u32 s38, s38, s79"); e(f"s_and_b32 s38, s38, {ROT >> 3}"); e("s_lshl_b32 s38, s38, 2")
e("s_mul_i32 s36, s3, 28"); e("s_add_u32 s36, s36, s38"); e("s_cmp_ge_u32 s36, 112"); e("s_cselect_b32 s36, 0, s36"); e("s_lshl_b32 s36, s36, 11")
e(f"s_mul_i32 s44, s78, {112*2048}"); e("s_add_u32 s80, s44, s36"); e(f"s_add_u32 s45, s44, {112*2048}")
e(f"s_mul_i32 s46, s79, {112*2048}"); e(f"s_add_u32 s46, s46, {WD_OFF}"); e("s_add_u32 s81, s46, s36"); e(f"s_add_u32 s47, s46, {112*2048}")
stamp(1)
e(f"s_waitcnt vmcnt({14 if PF == 1 else 12})")
e("s_and_b32 s68, s68, 0xfffe"); e("s_or_b32 s68, s68, 1"); e("s_mov_b32 s69, 0"); e("v_lshlrev_b32 v31, 8, v0")
e("v_mov_b32 v248, 0"); e("s_mov_b64 exec, s[68:69]"); e("buffer_store_dword v248, v31, s[20:23], s77 offen sc1"); e("s_mov_b64 exec, -1")
e("s_cmp_ge_u32 s2, 224"); e("s_cbranch_scc1 SJ_GATE")
e("s_mov_b32 s36, 0x05040100"); e("s_mov_b32 s38, 0x07060302")
for i in range(4): e(f"v_perm_b32 v{16+i}, v{209+2*i}, v{208+2*i}, s36"); e(f"v_perm_b32 v{20+i}, v{209+2*i}, v{208+2*i}, s38")
e("s_lshr_b32 s36, s2, 1"); e("s_lshl_b32 s36, s36, 11"); e("s_and_b32 s38, s2, 1"); e("s_lshl_b32 s38, s38, 9")
e("s_add_u32 s36, s36, s38"); e(f"s_add_u32 s36, s36, {WD_OFF}"); e(f"s_mov_b32 s38, {112*2048}")
for c in range(2):
    e(f"v_lshl_add_u32 v24, v253, 1, {c}")
    e("v_sub_u32 v25, 0x200, v24"); e("v_cmp_gt_u32 vcc, 0x100, v24"); e("v_and_b32 v25, 0xff, v25"); e("s_nop 0")
    e("v_cndmask_b32 v25, v25, v24, vcc")
    e("v_lshrrev_b32 v26, 5, v25"); e("v_mul_lo_u32 v26, v26, s38"); e("v_lshrrev_b32 v24, 8, v24"); e("v_lshl_add_u32 v26, v24, 10, v26")
    e("v_and_b32 v25, 31, v25"); e(f"v_lshl_add_u32 v{27+c}, v25, 4, v26")
    e(f"buffer_store_dwordx4 {vr(16+4*c,4)}, v{27+c}, s[20:23], s36 offen sc1")
lab("SJ_GATE")
e(GCMP); e("s_cbranch_scc0 SJ_DONE")
e("v_mov_b32 v208, 0"); e("v_mov_b32 v209, 0")
for i in range(16):
    e(f"v_lshlrev_b32 v210, 16, v{216+i}"); e(f"v_lshlrev_b32 v211, 16, v{232+i}")
    e(f"v_and_b32 v{216+i}, 0xffff0000, v{216+i}"); e(f"v_and_b32 v{232+i}, 0xffff0000, v{232+i}")
    e("v_fmac_f32 v208, v210, v211"); e("v_add_f32 v209, v209, v210")
    e(f"v_fmac_f32 v208, v{216+i}, v{232+i}"); e(f"v_sub_f32 v209, v209, v{216+i}")
for sh in (8, 4, 2, 1):
    e("s_nop 1")
    e(f"v_add_f32_dpp v208, v208, v208 row_ror:{sh} row_mask:0xf bank_mask:0xf")
    e(f"v_add_f32_dpp v209, v209, v209 row_ror:{sh} row_mask:0xf bank_mask:0xf")
e("v_mul_f32 v208, 0xbfb8aa3b, v208"); e("v_exp_f32 v208, v208"); e("v_sub_u32 v210, 0x800, v251"); e("v_add_f32 v208, 1.0, v208")
e("v_rcp_f32 v208, v208"); e("v_cmp_gt_u32 vcc, 0x400, v251"); e("v_and_b32 v210, 0x3ff, v210"); e("s_nop 0")
e("v_cndmask_b32 v210, v210, v251, vcc")
e("v_lshrrev_b32 v211, 6, v210"); e("v_lshlrev_b32 v211, 7, v211"); e("v_and_b32 v212, 1, v210"); e("v_lshl_add_u32 v211, v212, 6, v211")
e("v_bfe_u32 v212, v210, 1, 5"); e("v_add_u32 v211, v211, v212"); e("v_lshrrev_b32 v212, 10, v251"); e("v_lshl_add_u32 v211, v212, 5, v211")
e("v_lshlrev_b32 v211, 2, v211"); e(f"s_mov_b32 s36, {GT_OFF}")
e("s_mov_b32 exec_lo, 0x10001"); e("s_mov_b32 exec_hi, 0x10001")
e("buffer_store_dword v208, v211, s[20:23], s36 offen sc1"); e("s_mov_b64 exec, -1")
for g in range(4): e(f"v_readlane_b32 s{64+g}, v209, {16*g}")
e("s_nop 3")
e("v_mov_b32 v210, s66"); e("v_add_f32 v210, s65, v210")
e("s_cmp_eq_u32 s76, 0"); e("s_cselect_b32 s65, 0, s65"); e("s_cselect_b32 s66, 0, s66")
e("v_mov_b32 v211, s64"); e("v_add_f32 v211, s65, v211"); e("v_mov_b32 v212, s67"); e("v_add_f32 v212, s66, v212")
e("v_add_f32 v213, v211, v212"); e("v_sub_f32 v214, v211, v212"); e("v_cvt_pk_bf16_f32 v213, v213, v214")
e("s_lshr_b32 s36, s76, 4"); e("s_lshl_b32 s36, s36, 11"); e("s_and_b32 s38, s76, 8"); e("s_lshl_b32 s38, s38, 6")
e("s_add_u32 s36, s36, s38"); e("s_and_b32 s38, s76, 7"); e("s_lshl_b32 s38, s38, 1"); e("s_add_u32 s36, s36, s38")
e(f"s_add_u32 s36, s36, {EO_OFF + 1024}"); e(f"s_add_u32 s38, s36, {8*33*2048}")
e("s_mov_b64 exec, 1")
e("buffer_store_short v213, v248, s[20:23], s36 offen sc1"); e("buffer_store_short_d16_hi v213, v248, s[20:23], s38 offen sc1")
e("s_mov_b64 exec, -1")
e("s_cmp_eq_u32 s76, 0"); e("s_cbranch_scc0 SJ_DONE")
e("v_cvt_pk_bf16_f32 v216, v210, 0"); e("v_cmp_eq_u32 vcc, 0, v0"); e("v_mov_b32 v217, 0"); e("v_mov_b32 v218, 0"); e("v_mov_b32 v219, 0")
e("v_cndmask_b32 v216, 0, v216, vcc")
e(f"s_mov_b32 s36, {EO_OFF + 32*2048 + 1024}"); e(f"s_mov_b32 s38, {EO_OFF + (8*33+32)*2048 + 1024}")
e("s_mov_b32 exec_lo, 1"); e("s_mov_b32 exec_hi, 1")
e("buffer_store_dwordx4 v[216:219], v1, s[20:23], s36 offen sc1"); e("buffer_store_dwordx4 v[216:219], v1, s[20:23], s38 offen sc1")
e("s_mov_b64 exec, -1")
lab("SJ_DONE")
e("v_and_b32 v14, 3, v0"); e("v_lshlrev_b32 v14, 6, v14")
e("v_and_b32 v16, 31, v0"); e("v_lshlrev_b32 v16, 2, v16"); e("v_lshrrev_b32 v17, 5, v0"); e("v_lshlrev_b32 v17, 4, v17")
e("s_lshl_b32 s82, s6, 9"); e(f"s_add_u32 s82, s82, {GT_OFF}"); e("s_lshl_b32 s83, s78, 8"); e(f"s_add_u32 s83, s83, {GT_OFF}")
e("s_lshr_b32 s36, s78, 1"); e("s_lshl_b32 s36, s36, 6"); e("s_and_b32 s38, s78, 1"); e("s_add_u32 s70, s36, s38")
e("v_and_b32 v208, 31, v0"); e("v_lshl_add_u32 v208, v208, 1, s70"); e("v_cmp_eq_u32 s[64:65], 0, v208")
e("v_lshrrev_b32 v209, 5, v0"); e("s_lshl_b32 s36, s3, 7"); e("v_lshl_add_u32 v209, v209, 3, s36"); e("v_mul_lo_u32 v209, v209, v208")
CSA = 152
def cslist():
    r = ["v_cvt_f32_u32 v209, v209", "v_cvt_f32_u32 v208, v208", "v_mul_f32 v209, 0x3a000000, v209", "v_mul_f32 v208, 0x3a000000, v208",
         "v_mul_f32 v210, 0x41100000, v208", "v_mov_b32 v211, 0xbf803f80"]
    for k in range(9):
        r.append("v_fract_f32 v209, v209")
        for i in range(4):
            r += ["v_add_f32 v212, v209, v208", "v_cos_f32 v213, v209", "v_sin_f32 v214, -v209", f"v_add_f32 v209, v212, v{208 if i < 3 else 210}",
                  "v_cos_f32 v215, v212", "v_sin_f32 v216, -v212", "v_cvt_pk_bf16_f32 v217, v213, v215", "s_nop 0", "v_cvt_pk_bf16_f32 v218, v214, v216",
                  f"v_accvgpr_write_b32 a{CSA+8*k+i}, v217", "v_cndmask_b32 v218, v218, v211, s[64:65]", f"v_accvgpr_write_b32 a{CSA+8*k+4+i}, v218"]
    return [x for x in r if x != "s_nop 0"]
def wdreg(s_): return ar(8*s_, 8) if s_ < 19 else ar(224 + 8*(s_-19), 8) if s_ < 23 else vr(168 + 8*(s_-23), 8)
def sub(r, f):
    k, lo = r[0], int(r[2:r.index(':')]); return f"{k}[{lo+4*f}:{lo+4*f+3}]"
ST0 = int(OPT.get('st0', 1)); assert not PF
CSN = int(OPT.get('csn', 2))
e("s_cmp_ge_u32 s7, 14"); e("s_cbranch_scc1 P1_DFT")
ACC, FA, FB, GV = 32, 160, 184, 224
def mainloop(dft):
    T = "D" if dft else "F"
    def reads(st, ks, F):
        buf = st % 3; r = []
        for u in range(2):
            for rh in range(2):
                off = buf*32768 + u*16384 + ks*4096 + rh*1024; a = 12
                if off >= 65536: off -= 65536; a = 13
                r.append(f"ds_read_b64_tr_b16 {vr(F+16+4*u+2*rh,2)}, v{a} offset:{off}")
        for f in range(4): r.append(f"ds_read_b128 {vr(F+4*f,4)}, v{8+ks} offset:{XB + buf*16384 + f*4096}")
        return r
    def kstep(F, first, rd, extra):
        for i in range(8):
            c = vr(ACC+16*i, 16); x, w = vr(F+4*(i>>1), 4), vr(F+16+4*(i&1), 4)
            e(f"v_mfma_f32_32x32x16_bf16 {c}, {x if dft else w}, {w if dft else x}, {'0' if first else c}")
            if rd: e(rd[i])
            for _ in range(CSN):
                if cs: e(cs.pop(0))
            if extra and i & 1:
                for s in extra.pop(0): e(s)
                MQ.append('d')
            elif wq and (i & 1 or (i in ESL and dmaleft[0])):
                MQ.append('g' if NWD - len(wq) < 12 else 'w')
                for s in wq.pop(0): e(s)
    wd = []; cs = cslist(); wq = []; dmaleft = [True]
    global MQ
    MQ = []
    def after(n):
        idx = [i for i, t in enumerate(MQ) if t == 'd']; return len(MQ) - 1 - idx[n-1] if n else len(MQ)
    for s in range(28):
        for f in range(2): wd.append([f"buffer_load_dwordx4 {sub(wdreg(s),f)}, v1, s[20:23], s81 offen offset:{2048*(s&1)+1024*f} sc1"])
        if s & 1: wd[-1] += ["s_add_u32 s81, s81, 4096", "s_cmp_ge_u32 s81, s47", "s_cselect_b32 s81, s46, s81"]
    gl = [[f"buffer_load_dword v{20+f}, v16, s[20:23], s82 offen offset:{128*f} sc1"] for f in range(4)]
    gl += [[f"buffer_load_dwordx4 {vr(GV+4*q,4)}, v17, s[20:23], s83 offen offset:{32*q} sc1"] for q in range(8)]
    wd = gl + wd
    global WDREST
    WDREST = wd[NWD:]
    e("s_barrier"); stamp(2)
    for r in reads(0, 0, FA): e(r)
    extra = dma_list(2)
    if PF == 2: extra[-1] += pfl(T)
    for st in range(8):
        e("s_waitcnt lgkmcnt(0)"); kstep(FA, st == 0, reads(st, 1, FB), extra)
        e("s_waitcnt lgkmcnt(0)"); kstep(FB, False, reads(st, 2, FA), extra)
        e("s_waitcnt lgkmcnt(0)"); kstep(FA, False, reads(st, 3, FB), extra)
        if st < 7:
            assert not extra
            if ST0 and st == 0:
                e("s_cmp_ge_u32 s2, 224"); e(f"s_cbranch_scc1 W13{T}"); e(GCMP); e(f"s_cbranch_scc1 W18{T}")
                e("s_waitcnt vmcnt(15)"); e(f"s_branch W18{T}"); lab(f"W13{T}"); e("s_waitcnt vmcnt(13)"); lab(f"W18{T}")
                e("s_waitcnt vmcnt(18) lgkmcnt(0)"); e("s_barrier")
            else:
                e(f"s_waitcnt vmcnt({min(63, after(12*st))}) lgkmcnt(0)"); e("s_barrier")
            if st in (0, 2, 4, 5, 6): stamp({0:1, 2:4, 4:5, 5:6, 6:7}[st], 1)
            if st == ST0:
                e("s_cmp_eq_u32 s3, 0"); e(f"s_cbranch_scc0 NOARR{T}"); e("s_and_b32 s36, s2, 3"); e("s_lshl_b32 s36, s36, 6")
                e("v_mov_b32 v15, 1"); e("s_mov_b64 exec, 1"); e("buffer_atomic_add v15, v248, s[28:31], s36 offen sc1"); e("s_mov_b64 exec, -1")
                lab(f"NOARR{T}")
            if st == CST-1: e("buffer_load_dword v15, v14, s[28:31], 0 offen sc1")
            if st == 5: dmaleft[0] = False
            if st == CST:
                e("s_mov_b32 s36, 0"); lab(f"C0CHK{T}"); e("v_cmp_gt_u32 vcc, 64, v15"); e(f"s_cbranch_vccz C0OK{T}")
                e("s_sleep 2"); e("buffer_load_dword v15, v14, s[28:31], 0 offen sc1"); e("s_add_u32 s36, s36, 1"); e("s_waitcnt vmcnt(0)")
                e("s_cmp_lt_u32 s36, 0x40000"); e(f"s_cbranch_scc1 C0CHK{T}"); lab(f"C0OK{T}"); wq += wd[:NWD]
            if st + 3 <= 7: extra = dma_list(st % 3)
            kstep(FB, False, reads(st+1, 0, FA), extra)
        else:
            e("s_waitcnt lgkmcnt(0)"); kstep(FB, False, None, extra)
    print("left after loop", len(wq))
    for g in wq:
        MQ.append('w')
        for s in g: e(s)
    assert not cs
    stamp(3)
mainloop(False)
e("s_mul_i32 s36, s6, 224"); e("s_lshl_b32 s38, s7, 3"); e("s_add_u32 s36, s36, s38"); e("s_lshl_b32 s38, s3, 1"); e("s_add_u32 s36, s36, s38")
e("s_lshl_b32 s36, s36, 11"); e(f"s_add_u32 s38, s36, {112*2048}")
e(f"s_waitcnt vmcnt({min(63, len(MQ) - 1 - max(i for i, t in enumerate(MQ) if t == 'g'))})")
for f in range(4): e(f"v_sub_f32 v{20+f}, 1.0, v{20+f}")
for f in range(4): e(f"v_rcp_f32 v{20+f}, v{20+f}")
e("s_mov_b32 s64, 0xbfb8aa3b"); e("s_mov_b32 s65, 0xbfb8aa3b")
for f in range(4): e(f"v_min_f32 v{24+2*f}, 0x71800000, v{20+f}"); e(f"v_min_f32 v{25+2*f}, 0x71800000, v{20+f}")
for f in range(4):
    g = ACC + 32*f; u = g + 16
    for h in range(2):
        P = [2*i for i in range(4)]
        for i in P: e(f"v_pk_mul_f32 {vr(FA+i,2)}, {vr(g+8*h+i,2)}, s[64:65]")
        for i in range(8): e(f"v_exp_f32 v{FA+i}, v{FA+i}")
        for i in P: e(f"v_pk_mul_f32 {vr(g+8*h+i,2)}, {vr(g+8*h+i,2)}, {vr(u+8*h+i,2)}")
        for i in P: e(f"v_pk_fma_f32 {vr(FA+i,2)}, {vr(FA+i,2)}, {vr(24+2*f,2)}, {vr(24+2*f,2)}")
        for i in range(8): e(f"v_rcp_f32 v{FA+i}, v{FA+i}")
        for i in P: e(f"v_pk_mul_f32 {vr(g+8*h+i,2)}, {vr(g+8*h+i,2)}, {vr(FA+i,2)}")
        d = u + 8*h
        for i in range(4): e(f"v_cvt_pk_bf16_f32 v{d+i}, v{g+8*h+2*i}, v{g+8*h+2*i+1}")
        e(f"buffer_store_dwordx4 {vr(d,4)}, v1, s[20:23], s{38 if f >> 1 else 36} offen offset:{2048*h + 1024*(f&1)} sc1")
lab("P1_DONE")
for g in WDREST[:NW2]:
    for x in g: e(x)
e(f"s_waitcnt vmcnt({len(WDREST[:NW2])})"); e("s_barrier")
e("v_mov_b32 v11, 1"); e("v_lshlrev_b32 v12, 8, v0"); e("s_cmp_eq_u32 s3, 0"); e("s_cselect_b64 exec, s[68:69], 0"); e("s_cbranch_execz NOFLAG")
e("buffer_store_dword v11, v12, s[20:23], s77 offen sc1")
lab("NOFLAG"); e("s_mov_b64 exec, -1"); stamp(4)
NW3 = int(OPT.get('nw3', 99))
e("v_min_u32 v13, 45, v0"); e("v_lshlrev_b32 v13, 2, v13"); e("s_lshr_b32 s38, s78, 1"); e("s_lshl_b32 s38, s38, 8")
e(f"s_add_u32 s38, s38, {FL_OFF}"); e("s_mov_b32 s36, 0")
NP = int(OPT.get('np', 20)); WL = WDREST[NW2:NW2+NW3]
for n, g in enumerate(WL):
    if n == NP:
        e("s_cmp_eq_u32 s3, 0"); e("s_cbranch_scc0 NOEP"); e("buffer_load_dword v14, v13, s[20:23], s38 offen sc1"); lab("NOEP")
    for x in g: e(x)
WR = WDREST[NW2+NW3:]
e("s_and_b32 s82, s78, 1"); e("s_lshl_b32 s82, s82, 3"); e("s_add_u32 s82, s82, s79"); e("s_mul_i32 s82, s82, 33")
e("s_lshl_b32 s39, s3, 3"); e("s_add_u32 s82, s82, s39"); e("s_lshl_b32 s82, s82, 11"); e(f"s_add_u32 s82, s82, {EO_OFF}")
e("s_cmp_eq_u32 s3, 3"); e("s_cselect_b32 s39, 0, 0x40000000")
e("s_cmp_eq_u32 s3, 0"); e("s_cbranch_scc0 POLLOK")
if NP < len(WL): e(f"s_waitcnt vmcnt({len(WL)-NP})"); e("v_cmp_ne_u32 vcc, 1, v14"); e("s_cbranch_vccz POLLOK")
lab("POLL"); e("buffer_load_dword v14, v13, s[20:23], s38 offen sc1"); e("s_add_u32 s36, s36, 1"); e("s_waitcnt vmcnt(0)")
e("v_cmp_ne_u32 vcc, 1, v14"); e("s_cbranch_vccz POLLOK"); e(f"s_sleep {OPT.get('slp', 8)}"); e("s_cmp_lt_u32 s36, 0x40000"); e("s_cbranch_scc1 POLL")
lab("POLLOK"); e("s_barrier"); stamp(5)
Q = []
hreg = {}
def ld(tag, dst, sreg, off):
    e(f"buffer_load_dwordx4 {dst}, v1, s[20:23], s{sreg} offen offset:{off} sc1"); Q.append(tag)
nh = [0]
def ldh(kind, base):
    s = nh[0]; nh[0] += 1; hreg[s] = (kind, base)
    for f in range(2): ld(('h', s), (ar if kind == 'a' else vr)(base+4*f, 4), 80, 2048*(s&1)+1024*f)
    if s & 1: e("s_add_u32 s80, s80, 4096"); e("s_cmp_ge_u32 s80, s45"); e("s_cselect_b32 s80, s44, s80")
def wait(tag):
    last = max(i for i, t in enumerate(Q) if t == tag or t == ('w', tag[1]) and tag[0] == 'h'); e(f"s_waitcnt vmcnt({min(63, len(Q)-1-last)})")
def ldw(n):
    for _ in range(n):
        if WR:
            Q.append(('w', 28 - (len(WR)+1)//2))
            for x in WR.pop(0): e(x)
for k in range(9):
    if k == 8: e("s_add_u32 s82, s82, s39")
    for f in range(2): ld(('e', k), vr(96+8*k+4*f, 4), 82, 2048*(k&1)+1024*f)
    if k & 1: e("s_add_u32 s82, s82, 4096")
for b in (208, 216, 16, 24): ldh('v', b)
A2 = 32
for k in range(9):
    wait(('e', k))
    for i in range(4):
        c = vr(A2+16*i, 16); e(f"v_mfma_f32_32x32x16_bf16 {c}, {ar(CSA+8*k+4*(i>>1),4)}, {vr(96+8*k+4*(i&1),4)}, {'0' if k == 0 else c}")
    ldh('a', CSA+8*k)
    if k == 8: ldh('v', 160)
    ldw(int(OPT.get('wn', 2)))
e("s_cmp_eq_u32 s79, 0"); e("s_cselect_b32 s24, 1, 0"); e("s_mov_b32 s25, s24")
e("s_cmp_eq_u32 s78, 0"); e("s_cselect_b32 s26, -1, 0"); e("s_mov_b32 s27, 0")
CB = []; e0 = e
def e(s): CB.append(s)
PP, PQ, QP, QQ = A2, A2+16, A2+32, A2+48
for i in range(16):
    e(f"v_sub_f32 v4, v{PP+i}, v{QQ+i}"); e(f"v_add_f32 v5, v{PP+i}, v{QQ+i}")
    e(f"v_cndmask_b32 v6, v4, v{PP+i}, s[24:25]"); e(f"v_cndmask_b32 v7, v5, v{PQ+i}, s[24:25]")
    e(f"v_cndmask_b32 v8, v5, v{PP+i}, s[24:25]"); e(f"v_cndmask_b32 v9, v4, v{PQ+i}, s[24:25]")
    if i == 0:
        e(f"v_cndmask_b32 v4, v{PP}, v{PQ}, s[24:25]"); e(f"v_cndmask_b32 v5, v{QP}, v{QQ}, s[24:25]")
        e(f"v_cndmask_b32 v6, v6, v{PP}, s[26:27]"); e(f"v_cndmask_b32 v7, v7, v4, s[26:27]")
        e(f"v_cndmask_b32 v8, v8, v{QP}, s[26:27]"); e(f"v_cndmask_b32 v9, v9, v5, s[26:27]")
    for q in range(4): e(f"v_mul_f32 v{A2+16*q+i}, v{GV+16*(q>>1)+i}, v{6+q}")
e = e0; B2 = 96; gvfree = False
for s in range(28):
    wait(('h', s)); kind, base = hreg[s]
    for i in range(4):
        c = vr(B2+16*i, 16); e(f"v_mfma_f32_32x32x16_bf16 {c}, {(ar if kind == 'a' else vr)(base+4*(i>>1),4)}, {sub(wdreg(s),i&1)}, {c if s else 0}")
        if s == 0 and i == 3: e("s_nop 7")
        for _ in range(int(OPT.get('cbn', 3))):
            if s and CB: e(CB.pop(0))
    if nh[0] < 28: ldh(kind, base)
    ldw(2); assert 28 - (len(WR)+1)//2 > s + 1 or not WR
assert not CB
stamp(6)
srd(8, 60, 2048*1024)
e("s_lshl_b32 s12, s3, 12"); e("v_add_u32 v2, s12, v1")
e("v_and_b32 v3, 31, v0"); e("s_lshl_b32 s12, s79, 5"); e("v_add_u32 v3, s12, v3")
e("v_sub_u32 v4, 0x200, v3"); e("v_mov_b32 v5, 0x100"); e("v_cndmask_b32 v4, v4, v5, s[24:25]")
e("s_and_b32 s12, s3, 1"); e("s_cselect_b64 s[28:29], -1, 0"); e("v_cndmask_b32 v3, v3, v4, s[28:29]")
e("v_lshrrev_b32 v4, 5, v0"); e("v_lshl_add_u32 v4, v4, 3, s70")
for qd in range(4):
    for q in range(8): e(f"v_pk_add_f32 {vr(A2+16*qd+2*q,2)}, {vr(A2+16*qd+2*q,2)}, {vr(B2+16*qd+2*q,2)}")
    for q in range(4): e(f"ds_write_b128 v2, {vr(A2+16*qd+4*q,4)} offset:{qd*16384+q*1024}")
e("s_lshl_b32 s12, s3, 14"); e("v_add_u32 v2, s12, v1")
e("v_sub_u32 v5, 0x800, v4"); e("s_movk_i32 s12, 0x800"); e("s_cmp_ge_u32 s3, 2"); e("s_cselect_b64 s[28:29], -1, 0")
e("s_cselect_b32 s12, 0xfffff800, s12"); e("s_mul_i32 s13, s12, 5"); e("s_and_b64 s[26:27], s[26:27], s[28:29]")
e("v_cndmask_b32 v4, v4, v5, s[28:29]"); e("v_lshlrev_b32 v3, 1, v3"); e("v_lshl_add_u32 v4, v4, 10, v3")
e("v_add_u32 v5, 0x100000, v3"); e("v_cndmask_b32 v5, v4, v5, s[26:27]")
for i in range(1, 16): e(f"v_add_u32 v{6+i}, s{13 if (i & 3) == 0 else 12}, v{4 if i == 1 else 5+i}")
e("s_waitcnt lgkmcnt(0)"); e("s_barrier")
for q in range(4):
    for w in range(4): e(f"ds_read_b128 {vr(A2+16*w+4*q,4)}, v2 offset:{w*4096+q*1024}")
for q in range(4):
    e(f"s_waitcnt lgkmcnt({12-4*q})")
    for i in range(4*q, 4*q+4): e(f"v_add_f32 v{A2+i}, v{A2+i}, v{A2+16+i}"); e(f"v_add_f32 v{A2+32+i}, v{A2+32+i}, v{A2+48+i}")
    for i in range(4*q, 4*q+4): e(f"v_add_f32 v{A2+i}, v{A2+i}, v{A2+32+i}")
    for i in range(2*q, 2*q+2): e(f"v_cvt_pk_bf16_f32 v{96+i}, v{A2+2*i}, v{A2+2*i+1}")
    for i in range(4*q, 4*q+4): e(f"buffer_store_short{'_d16_hi' if i & 1 else ''} v{96+i//2}, v{5 if i == 0 else 6+i}, s[8:11], 0 offen {OPT.get('ost', '').replace('+', ' ')}")
if TS:
  if 1:
    e("s_waitcnt vmcnt(0)"); stamp(7); e("s_waitcnt lgkmcnt(0)"); e("s_mov_b64 exec, 1")
    for i in range(8): e(f"v_mov_b32 v{8+i}, s{84+2*i}")
  if TS == 2:
    srd(28, 62, 256); e("v_mov_b32 v16, 0"); e("v_not_b32 v17, v8"); e("s_cmp_eq_u32 s3, 0"); e("s_cbranch_scc0 K_END")
    e("buffer_atomic_umax v17, v16, s[28:31], 0 offen offset:4 sc1")
    for i in range(8): e(f"buffer_atomic_umax v{8+i}, v16, s[28:31], 0 offen offset:{8+4*i} sc1")
    for i in (2, 3, 5, 7): e(f"v_not_b32 v{8+i}, v{8+i}")
    for n, i in enumerate((2, 3, 5, 7)): e(f"buffer_atomic_umax v{8+i}, v16, s[28:31], 0 offen offset:{40+4*n} sc1")
  if TS == 1:
    e("v_mov_b32 v16, 0"); e("s_lshl_b32 s36, s2, 3"); e("s_add_u32 s36, s36, s3"); e("s_lshl_b32 s36, s36, 5"); e(f"s_add_u32 s36, s36, {TS_OFF}")
    e("buffer_store_dwordx4 v[8:11], v16, s[20:23], s36 offen"); e("buffer_store_dwordx4 v[12:15], v16, s[20:23], s36 offen offset:16")
lab("K_END")
e("s_endpgm")
lab("P1_DFT")
mainloop(True)
e("s_cmp_eq_u32 s7, 14"); e("s_cselect_b32 s64, 1.0, -1.0")
e("s_mul_i32 s36, s3, 33"); e("s_lshl_b32 s36, s36, 11"); e("s_sub_u32 s38, s7, 14"); e("s_lshl_b32 s38, s38, 10")
e("s_add_u32 s36, s36, s38"); e(f"s_add_u32 s36, s36, {EO_OFF}")
e("s_lshl_b32 s38, s7, 2"); e("s_add_u32 s38, s38, s3"); e("s_cmp_eq_u32 s38, 60"); e("s_cselect_b32 s66, -2, -1"); e("s_mov_b32 s67, s66")
e("v_mov_b32 v25, 0"); e("v_mov_b32 v26, 0"); e("v_mov_b32 v27, 0"); e("v_cmp_gt_u32 vcc, 32, v0"); e("s_nop 7")
for u in range(2):
    R = [ACC + 32*f + 16*u for f in range(4)]
    e("s_cmp_eq_u32 s6, 0"); e(f"s_cbranch_scc0 DGEN{u}")
    e(f"v_fma_f32 v24, v{R[1]}, s64, v{R[2]}"); e("v_cvt_pk_bf16_f32 v24, v24, 0")
    e("v_cndmask_b32 v24, 0, v24, vcc"); e(f"v_cndmask_b32 v{R[1]}, v{R[1]}, v25, vcc"); e(f"v_cndmask_b32 v{R[2]}, v{R[2]}, v25, vcc")
    e(f"s_add_u32 s38, s36, {32*2048}"); e(f"s_add_u32 s39, s36, {(8*33+32)*2048}")
    if u == 0: e("s_mov_b64 exec, s[66:67]")
    e("buffer_store_dwordx4 v[24:27], v1, s[20:23], s38 offen sc1"); e("buffer_store_dwordx4 v[24:27], v1, s[20:23], s39 offen sc1")
    e("s_mov_b64 exec, -1")
    lab(f"DGEN{u}")
    e("s_lshl_b32 s38, s6, 12"); e("s_add_u32 s38, s36, s38"); e(f"s_add_u32 s39, s38, {8*33*2048}")
    for i in range(16): e(f"v_fma_f32 v{R[0]+i}, v{R[1]+i}, s64, v{R[0]+i}"); e(f"v_fma_f32 v{R[3]+i}, v{R[2]+i}, s64, v{R[3]+i}")
    for i in range(16): e(f"v_add_f32 v{R[1]+i}, v{R[0]+i}, v{R[3]+i}"); e(f"v_sub_f32 v{R[2]+i}, v{R[0]+i}, v{R[3]+i}")
    for p in range(2):
        for i in range(8): e(f"v_cvt_pk_bf16_f32 v{R[0]+8*p+i}, v{R[1+p]+2*i}, v{R[1+p]+2*i+1}")
    if u == 0: e("s_mov_b64 exec, s[66:67]")
    for p in range(2):
        for h in range(2): e(f"buffer_store_dwordx4 {vr(R[0]+8*p+4*h,4)}, v1, s[20:23], s{38+p} offen offset:{2048*h} sc1")
    e("s_mov_b64 exec, -1"); e(f"s_add_u32 s36, s36, {4*33*2048}")
e("s_branch P1_DONE"); lab("CODE_END")
L += ['.section .rodata,"a"', ".p2align 6", f".amdhsa_kernel {KN}", "  .amdhsa_next_free_vgpr 512", "  .amdhsa_next_free_sgpr 102",
      "  .amdhsa_accum_offset 256", "  .amdhsa_group_segment_fixed_size 0", "  .amdhsa_kernarg_size 104",
      "  .amdhsa_user_sgpr_count 2", "  .amdhsa_user_sgpr_kernarg_segment_ptr 1", "  .amdhsa_system_sgpr_workgroup_id_x 1", ".end_amdhsa_kernel"]
open(sys.argv[1], 'w').write("\n".join(L) + "\n")
```
